```python
import torch

def _softmax(x, axis=-1):
    return torch.softmax(x, dim=axis)
def _gelu(x):
    return torch.nn.functional.gelu(x, approximate="tanh")
def _silu(x):
    return torch.nn.functional.silu(x)
def _sigmoid(x):
    return torch.sigmoid(x)
def _layernorm(x, axis=-1, eps=1e-5):
    m = x.mean(dim=axis, keepdim=True)
    v = x.var(dim=axis, keepdim=True, unbiased=False)
    return (x - m) / torch.sqrt(v + eps)
def _scatter_add(tgt, idx, src, axis=0):
    return tgt.clone().index_add_(axis, idx, src)
def _segment_sum(src, seg, n):
    out = torch.zeros((n,) + src.shape[1:], dtype=src.dtype)
    return out.index_add_(0, seg, src)
def _pad(x, pw):
    flat = tuple(v for pair in reversed(pw) for v in pair)
    return torch.nn.functional.pad(x, flat)

kernel_name = 'recurrent_scan__sliding_block_cached__geglu_ffn__prompt'

def setup_inputs():

    _w = (lambda a: (lambda t: t.to(torch.bfloat16) if t.is_floating_point() else t)(torch.as_tensor(a)))
    def _A_setup():
        B, Sq, D = 1, 2048, 512
        Hq, Hkv, Sk, Dh = 32, 32, 2048, 128
        assert Hq % Hkv == 0, (Hq, Hkv)
        return {
            "x": _w((lambda *s: torch.randn(*s, dtype=torch.bfloat16) * 0.05)(B, Sq, D)),
            "k_cache": _w((lambda *s: torch.randn(*s, dtype=torch.bfloat16) * 0.8)(B, Hkv, Sk, Dh)),
            "v_cache": _w((lambda *s: torch.randn(*s, dtype=torch.bfloat16) * 0.2)(B, Hkv, Sk, Dh)),
            "wq": _w((lambda *s: torch.randn(*s, dtype=torch.bfloat16) * 0.8)(D, Hq * Dh) * (D ** -0.5)),
            "wo": _w((lambda *s: torch.randn(*s, dtype=torch.bfloat16) * 0.2)(Hq * Dh, D) * ((Hq * Dh) ** -0.5)),
        }
    _A_in = _A_setup()

    def _B_setup():
        B, S, D, F = 1, 2048, 512, 1376
        return {
            "x": _w((lambda *s: torch.randn(*s, dtype=torch.bfloat16) * 0.05)(B, S, D)),
            "w_gate": _w((lambda *s: torch.randn(*s, dtype=torch.bfloat16) * 0.1)(D, F)),
            "w_up": _w((lambda *s: torch.randn(*s, dtype=torch.bfloat16) * 0.1)(D, F)),
            "w_down": _w((lambda *s: torch.randn(*s, dtype=torch.bfloat16) * 0.1)(F, D)),
        }
    _B_in = _B_setup()

    return {
        "A_x": _A_in["x"],
        "A_k_cache": _A_in["k_cache"],
        "A_v_cache": _A_in["v_cache"],
        "A_wq": _A_in["wq"],
        "A_wo": _A_in["wo"],
        "B_x": _B_in["x"],
        "B_w_gate": _B_in["w_gate"],
        "B_w_up": _B_in["w_up"],
        "B_w_down": _B_in["w_down"],
    }

def reference(A_x, A_k_cache, A_v_cache, A_wq, A_wo, B_x, B_w_gate, B_w_up, B_w_down):
    def _A_ref(x, k_cache, v_cache, wq, wo):
        B, Sq, D = x.shape
        Hq, Dh = 32, 128
        Hkv, Sk = k_cache.shape[1], k_cache.shape[2]
        W = min(4096, max(256, Sk // 4))
        rep = Hq // Hkv
        q = (lambda x, *d: x.permute(*d))((x @ wq).reshape(B, Sq, Hq, Dh), 0, 2, 1, 3)
        k = (lambda x, n, axis: torch.repeat_interleave(x, n, dim=axis))(k_cache[:, :, Sk - W:, :], rep, axis=1)
        v = (lambda x, n, axis: torch.repeat_interleave(x, n, dim=axis))(v_cache[:, :, Sk - W:, :], rep, axis=1)
        scores = torch.einsum("bhqd,bhkd->bhqk", q, k) * (Dh ** -0.5)
        p = _softmax(scores, axis=-1)
        o = torch.einsum("bhqk,bhkd->bhqd", p, v)
        return (lambda x, *d: x.permute(*d))(o, 0, 2, 1, 3).reshape(B, Sq, Hq * Dh) @ wo

    def _B_ref(x, w_gate, w_up, w_down):
        return (_gelu(x @ w_gate) * (x @ w_up)) @ w_down

    x = A_x
    xn = _layernorm(x, axis=-1)
    s = _A_ref(xn, A_k_cache, A_v_cache, A_wq, A_wo)
    g = _silu(_B_ref(xn, B_w_gate, B_w_up, B_w_down))
    return x + s * g
```

```python
import struct

class V:
    def __init__(s, i, n=1): s.i, s.n = i, n
    def __str__(s): return f"v{s.i}" if s.n == 1 else f"v[{s.i}:{s.i+s.n-1}]"
    def regs(s): return set(range(s.i, s.i + s.n))
    def __getitem__(s, k): return V(s.i + k)
    def sub(s, k, n): return V(s.i + k, n)

class S:
    def __init__(s, i, n=1): s.i, s.n = i, n
    def __str__(s): return f"s{s.i}" if s.n == 1 else f"s[{s.i}:{s.i+s.n-1}]"
    def regs(s): return set(range(s.i, s.i + s.n))
    def __getitem__(s, k): return S(s.i + k)

class Neg:
    def __init__(s, r): s.r = r
    def __str__(s): return "-" + str(s.r)

class Sp:
    def __init__(s, name): s.name = name
    def __str__(s): return s.name
VCC = Sp("vcc"); EXEC = Sp("exec"); M0 = Sp("m0")

def f32(x):
    return "0x%08x" % struct.unpack("<I", struct.pack("<f", x))[0]

TRANS = ("v_exp_f32", "v_rcp_f32", "v_rsq_f32", "v_sqrt_f32", "v_log_f32")

class Ins:
    def __init__(s, text, kind):
        s.text = text; s.kind = kind
        s.vr = set(); s.vw = set(); s.sr = set(); s.sw = set()
        s.op = text.split()[0]
        s.srcc = None
        s.ab = set()
        s.d = None
        s.tag = None
        s.states = 1

class Asm:
    def __init__(s):
        s.ins = []
    def _add(s, op, dsts, srcs, kind, mods=""):
        ops = list(dsts) + list(srcs)
        text = op + " " + ", ".join(str(o) for o in ops)
        if mods: text += " " + mods
        I = Ins(text, kind)
        for d in dsts:
            if isinstance(d, V): I.vw |= d.regs()
            elif isinstance(d, S): I.sw |= d.regs()
            elif isinstance(d, Sp): I.sw.add(d.name)
        for o in srcs:
            if isinstance(o, Neg): o = o.r
            if isinstance(o, V): I.vr |= o.regs()
            elif isinstance(o, S): I.sr |= o.regs()
            elif isinstance(o, Sp): I.sr.add(o.name)
        s.ins.append(I)
        return I
    def raw(s, text, kind="salu"):
        I = Ins(text, kind); s.ins.append(I); return I
    def label(s, name):
        I = Ins(name + ":", "label"); I.states = 0; s.ins.append(I)
    def comment(s, c):
        I = Ins("; " + c, "comment"); I.states = 0; s.ins.append(I)
    def v(s, op, dst, *srcs, mods=""):
        if op.startswith("v_mfma"): raise Exception("use mfma")
        kind = "valu"
        if op in TRANS: kind = "trans"
        if op.startswith("v_dot"): kind = "dot"
        if op.startswith("v_readfirstlane") or op.startswith("v_readlane"): kind = "readlane"
        I = s._add(op, [dst], srcs, kind, mods)
        if op.startswith("v_fmac") or op.startswith("v_dot2c"): I.vr |= dst.regs()
        if op.startswith("v_cndmask") and len(srcs) == 2: I.sr.add("vcc")
        return I
    def permswap(s, a, b):
        I = s._add("v_permlane32_swap_b32", [a], [b], "permlane")
        I.vr |= a.regs(); I.vw |= b.regs()
        return I
    def mfma(s, d, a, b, c):
        I = s._add("v_mfma_f32_32x32x16_bf16", [d], [a, b, c], "mfma")
        I.ab = a.regs() | b.regs()
        I.d = (d.i, d.n)
        if isinstance(c, V): I.srcc = (c.i, c.n)
        return I
    def s(s_, op, dst, *srcs):
        if op.startswith("s_cmp"):
            return s_._add(op, [], [dst] + list(srcs), "salu")
        return s_._add(op, [dst], srcs, "salu")
    def smem(s, op, dst, base, off):
        return s._add(op, [dst], [base, off], "smem")
    def ds_read(s, op, dst, addr, off=0):
        assert 0 <= off < 65536, off
        return s._add(op, [dst], [addr], "ldsr", f"offset:{off}" if off else "")
    def ds_write(s, op, addr, data, off=0):
        assert 0 <= off < 65536, off
        return s._add(op, [], [addr, data], "ldsw", f"offset:{off}" if off else "")
    def bload(s, op, dst, voff, srd, soff=0, off=0, tag=None, extra=""):
        assert 0 <= off < 4096
        I = s._add(op, [dst], [voff, srd, soff], "vload", ("offen" + (f" offset:{off}" if off else "") + (" " + extra if extra else "")))
        I.tag = tag; return I
    def dma(s, voff, srd, soff=0, off=0, tag=None, extra=""):
        assert 0 <= off < 4096
        I = s._add("buffer_load_dwordx4", [], [voff, srd, soff], "dma", "offen" + (f" offset:{off}" if off else "") + " lds" + (" " + extra if extra else ""))
        I.sr.add("m0")
        I.tag = tag; return I
    def bstore(s, op, data, voff, srd, soff=0, off=0, tag=None, extra=""):
        assert 0 <= off < 4096
        I = s._add(op, [], [data, voff, srd, soff], "vstore", "offen" + (f" offset:{off}" if off else "") + (" " + extra if extra else ""))
        I.data = data.regs(); I.wide = data.n >= 3
        I.tag = tag; return I
    def wait_vm(s, tag):
        I = Ins("WAITVM", "waitvm"); I.tag = tag; I.states = 0; s.ins.append(I)
    def wait_lgkm0(s):
        I = Ins("WAITLGKM0", "waitlgkm0"); I.states = 0; s.ins.append(I)
    def barrier(s):
        s.raw("s_barrier", "barrier")
    def nop(s, n):
        I = s.raw(f"s_nop {n}", "nop"); I.states = n + 1

    def insert_waits(s):
        out = []
        lq = []
        vq = []
        def emit_wait(vm=None, lg=None):
            t = "s_waitcnt"
            if vm is not None: t += f" vmcnt({vm})"
            if lg is not None: t += f" lgkmcnt({lg})"
            out.append(Ins(t, "wait"))
        for I in s.ins:
            if I.kind == "waitvm":
                idx = max([k for k, e in enumerate(vq) if e[1] == I.tag], default=-1)
                if idx >= 0:
                    n = len(vq) - idx - 1
                    assert n <= 63
                    emit_wait(vm=n); del vq[:idx + 1]
                continue
            if I.kind == "waitlgkm0":
                if lq: emit_wait(lg=0); lq.clear()
                continue
            if I.kind in ("label", "comment"):
                out.append(I); continue
            regs = I.vr | I.vw
            vmn = lgn = None
            idx = max([k for k, e in enumerate(lq) if e & regs], default=-1)
            if idx >= 0:
                lgn = len(lq) - idx - 1; del lq[:idx + 1]
            idx = max([k for k, e in enumerate(vq) if e[0] & regs], default=-1)
            if idx >= 0:
                vmn = len(vq) - idx - 1; del vq[:idx + 1]
                assert vmn <= 63
            if I.kind in ("ldsr", "ldsw") and len(lq) >= 15:
                k = len(lq) - 14
                lgn = min(lgn, 14) if lgn is not None else 14
                del lq[:k]
            if I.kind in ("vload", "dma", "vstore") and len(vq) >= 62:
                k = len(vq) - 61
                vmn = min(vmn, 61) if vmn is not None else 61
                del vq[:k]
            if vmn is not None or lgn is not None: emit_wait(vmn, lgn)
            out.append(I)
            if I.kind == "ldsr": lq.append(set(I.vw))
            elif I.kind == "ldsw": lq.append(set())
            elif I.kind == "vload": vq.append((set(I.vw), I.tag))
            elif I.kind in ("dma", "vstore"): vq.append((set(), I.tag))
        s.ins = out

    def fix_hazards(s):
        out = []
        VAL = ("valu", "trans", "dot", "permlane", "readlane")
        def need(P, C):
            n = 0
            pk, ck = P.kind, C.kind
            if pk in VAL:
                if ck == "mfma" and (P.vw & C.vr): n = max(n, 2)
                if ck == "permlane" and (P.vw & C.vr): n = max(n, 2)
                if ck == "readlane" and (P.vw & C.vr): n = max(n, 1)
                if pk == "trans" and ck in VAL and ck != "trans" and (P.vw & C.vr): n = max(n, 1)
                if pk == "dot" and ck in VAL + ("mfma", "vstore", "ldsw", "vload", "ldsr", "dma") and (P.vw & (C.vr | C.vw)):
                    n = max(n, 0 if (C.op == P.op and False) else 3)
                if P.sw:
                    if ck in VAL + ("mfma",) and (P.sw & C.sr): n = max(n, 2)
                    if ck in ("vload", "vstore", "dma") and (P.sw & C.sr): n = max(n, 5)
                    if ck in ("salu",) and (P.sw & C.sr): n = max(n, 2)
            if pk == "mfma":
                D = set(range(P.d[0], P.d[0] + P.d[1]))
                if ck == "mfma":
                    if D & C.ab: n = max(n, 12)
                    if C.srcc is not None:
                        cs = set(range(C.srcc[0], C.srcc[0] + C.srcc[1]))
                        if cs & D and C.srcc != P.d: n = max(n, 10)
                elif ck in VAL + ("vstore", "ldsw", "vload", "ldsr", "dma"):
                    if D & (C.vr | C.vw): n = max(n, 12)
                if P.srcc is not None and ck in VAL:
                    cs = set(range(P.srcc[0], P.srcc[0] + P.srcc[1]))
                    if cs & C.vw: n = max(n, 7)
            if pk == "salu" and "m0" in P.sw and ck == "dma": n = max(n, 1)
            if pk == "vstore" and getattr(P, "wide", False):
                if P.data & C.vw: n = max(n, 2)
            return n
        for I in s.ins:
            if I.kind in ("label", "comment"):
                out.append(I); continue
            req = 0
            dist = 0
            for P in reversed(out[-40:]):
                if P.kind in ("label", "comment"): continue
                nd = need(P, I)
                if nd > dist: req = max(req, nd - dist)
                dist += P.states
                if dist > 24: break
            while req > 0:
                k = min(req, 16)
                N = Ins(f"s_nop {k-1}", "nop"); N.states = k; out.append(N); req -= k
            out.append(I)
        s.ins = out

    def text(s):
        s.insert_waits(); s.fix_hazards()
        lines = []
        for I in s.ins:
            if I.kind == "label": lines.append(I.text)
            else: lines.append("    " + I.text)
        return "\n".join(lines) + "\n"
```

```python
import sys
from asmlib import *

KS_ACT = 344
KS_W = 342
WFRAG_OFF = 32 << 20
SLOT = 32768
SIDE = 131072
FMAT = 12416
LOG2E = 1.4426950408889634
SCALE = 128 ** -0.5

def srd(a, dst, lo, hi, size):
    a.s("s_mov_b32", dst[0], lo)
    a.s("s_and_b32", dst[1], hi, 0xffff)
    a.s("s_mov_b32", dst[2], size)
    a.s("s_mov_b32", dst[3], 0x00020000)

def interleave(*lists):
    out = []
    n = max(len(l) for l in lists)
    for i in range(n):
        for l in lists:
            if i < len(l): out.append(l[i])
    return out

def gen_attn():
    a = Asm()
    sWave, sHead, sQblk, sU0, sT, sT2, sM0b, sFb, sOnes, sL2E, sSc = [S(i) for i in (4, 5, 6, 7, 8, 9, 10, 11, 12, 13, 14)]
    sT3 = S(15)
    X_, K_, V_, WQ_, WG_, WU_, WO_, WD_, WS_, WF_ = [S(40 + 4 * i, 4) for i in range(10)]
    vLane, vTmp = V(240), V(241)
    vDW, vDF, vDK, vDV, vL16 = V(242), V(243), V(244), V(245), V(246)
    vA0, vA1 = V(247), V(248)
    vM, vR = V(249), V(250)
    vS0, vS1 = V(251), V(252)
    vT2, vT3, vT4 = V(253), V(254), V(255)
    X = lambda t: V(4 * t, 4)

    a.s("s_cmp_ge_u32", S(2), 256)
    a.raw("s_cbranch_scc1 L_attn_end", "branch")
    a.smem("s_load_dwordx16", S(16, 16), S(0, 2), 0)
    a.smem("s_load_dwordx8", S(32, 8), S(0, 2), 64)
    a.v("v_and_b32", vLane, 63, V(0))
    a.v("v_lshrrev_b32", vTmp, 6, V(0))
    a.v("v_readfirstlane_b32", sWave, vTmp)
    a.s("s_and_b32", sT, S(2), 7)
    a.s("s_lshr_b32", sT2, S(2), 3)
    a.s("s_lshl_b32", sHead, sT, 2)
    a.s("s_and_b32", sT, sT2, 3)
    a.s("s_add_u32", sHead, sHead, sT)
    a.s("s_lshr_b32", sQblk, sT2, 2)
    a.s("s_mul_i32", sT, sHead, 3)
    a.s("s_lshl_b32", sT2, sHead, 1)
    a.s("s_add_u32", sT2, sT2, 22)
    a.s("s_min_u32", sU0, sT, sT2)
    a.s("s_mov_b32", sOnes, 0x3f803f80)
    a.s("s_mov_b32", sL2E, f32(LOG2E))
    a.s("s_mov_b32", sSc, f32(SCALE))
    a.s("s_lshl_b32", sM0b, sWave, 10)
    a.v("v_lshlrev_b32", vL16, 4, vLane)
    a.s("s_lshl_b32", sT, sQblk, 8)
    a.s("s_lshl_b32", sT2, sWave, 5)
    a.s("s_add_u32", sT, sT, sT2)
    a.v("v_and_b32", vTmp, 31, vLane)
    a.v("v_add_u32", vTmp, sT, vTmp)
    a.v("v_lshlrev_b32", vTmp, 10, vTmp)
    a.v("v_lshrrev_b32", vT2, 5, vLane)
    a.v("v_lshl_add_u32", vA0, vT2, 4, vTmp)
    a.s("s_lshl_b32", sT, sWave, 4)
    a.v("v_lshrrev_b32", vTmp, 2, vLane)
    a.v("v_add_u32", vTmp, sT, vTmp)
    a.v("v_and_b32", vT2, 3, vLane)
    a.v("v_lshlrev_b32", vT3, 4, vT2)
    a.v("v_lshl_add_u32", vDW, vTmp, 13, vT3)
    a.v("v_lshl_add_u32", vDV, vTmp, 8, vT3)
    a.v("v_bfe_u32", vT3, vLane, 4, 2)
    a.v("v_xor_b32", vT3, vT3, vT2)
    a.v("v_lshlrev_b32", vT3, 4, vT3)
    a.v("v_lshl_add_u32", vDK, vTmp, 8, vT3)
    a.s("s_and_b32", sT, sWave, 3)
    a.s("s_lshl_b32", sT2, sT, 5)
    a.v("v_lshrrev_b32", vTmp, 1, vLane)
    a.v("v_add_u32", vTmp, sT2, vTmp)
    a.s("s_mov_b32", sT3, 2752)
    a.v("v_mul_lo_u32", vTmp, vTmp, sT3)
    a.v("v_and_b32", vT2, 1, vLane)
    a.v("v_lshl_add_u32", vDF, vT2, 4, vTmp)
    a.s("s_lshr_b32", sT2, sWave, 2)
    a.s("s_mul_i32", sFb, sT2, FMAT)
    a.s("s_lshl_b32", sT, sT, 10)
    a.s("s_add_u32", sFb, sFb, sT)
    a.raw("s_waitcnt lgkmcnt(0)")
    srd(a, X_, S(16), S(17), 2097152)
    a.s("s_mul_i32", sT, sHead, 524288)
    a.s("s_add_u32", sT, sT, 393216)
    a.s("s_add_u32", S(80), S(18), sT); a.s("s_addc_u32", S(81), S(19), 0)
    srd(a, K_, S(80), S(81), 131072)
    a.s("s_add_u32", S(80), S(20), sT); a.s("s_addc_u32", S(81), S(21), 0)
    srd(a, V_, S(80), S(81), 131072)
    a.s("s_lshl_b32", sT, sHead, 8)
    a.s("s_add_u32", S(80), S(22), sT); a.s("s_addc_u32", S(81), S(23), 0)
    a.s("s_sub_u32", S(82), 4194304, sT)
    srd(a, WQ_, S(80), S(81), S(82))
    srd(a, WO_, S(24), S(25), 4194304)
    srd(a, WD_, S(32), S(33), 1409024)
    srd(a, WS_, S(38), S(39), 268435456)
    a.s("s_cmp_ge_u32", sWave, 4)
    a.s("s_cselect_b32", S(80), S(30), S(28))
    a.s("s_cselect_b32", S(81), S(31), S(29))
    srd(a, WF_, S(80), S(81), 1409024)
    for t in range(32):
        a.bload("buffer_load_dwordx4", X(t), vA0, X_, 0, t * 32, tag="x")
    a.s("s_lshl_b32", sT, S(2), 14)
    a.s("s_lshl_b32", sT2, sWave, 11)
    a.v("v_add_u32", vTmp, sT2, vL16)
    a.s("s_add_u32", M0, sT2, SIDE)
    a.dma(vTmp, WO_, sT, 0, tag="side"); a.dma(vTmp, WO_, sT, 1024, tag="side")
    a.s("s_add_u32", M0, sT2, SIDE + 16384)
    a.dma(vTmp, WD_, sT, 0, tag="side"); a.dma(vTmp, WD_, sT, 1024, tag="side")

    def issue_chunk(ci):
        ty, c = ci // 4, ci % 4
        slot = (ci % 4) * SLOT
        tag = f"c{ci}"
        if ty == 1:
            a.s("s_lshl_b32", sT, sU0, 5)
            a.s("s_add_u32", sT, sT, c * 128 * 2752)
            for j in range(3):
                a.s("s_add_u32", M0, sFb, slot + j * 4096 - j * 32)
                a.dma(vDF, WF_, sT, j * 32, tag=tag)
        else:
            voff, rs, cs = {0: (vDW, WQ_, 128 * 8192), 2: (vDK, K_, 32768), 3: (vDV, V_, 32768)}[ty]
            a.s("s_mov_b32", sT, c * cs)
            for j in range(4):
                a.s("s_add_u32", M0, sM0b, slot + j * 8192 - j * 64)
                a.dma(voff, rs, sT, j * 64, tag=tag)
    for ci in range(3): issue_chunk(ci)

    def tr_base(dst, rowmul_hh, rowbytes, dhbytes):
        a.v("v_lshrrev_b32", vTmp, 5, vLane)
        a.v("v_mul_u32_u24", vTmp, rowmul_hh, vTmp)
        a.v("v_bfe_u32", vT2, vLane, 2, 2)
        a.v("v_add_u32", vTmp, vTmp, vT2)
        a.v("v_mul_u32_u24", vTmp, rowbytes, vTmp)
        a.v("v_bfe_u32", vT2, vLane, 4, 1)
        a.v("v_mul_u32_u24", vT2, dhbytes, vT2)
        a.v("v_add_u32", vTmp, vTmp, vT2)
        a.v("v_and_b32", vT2, 3, vLane)
        a.v("v_lshl_add_u32", dst, vT2, 3, vTmp)
    acc = [V(224 + i) for i in range(8)]
    for r in acc: a.v("v_mov_b32", r, 0)
    for t in range(32):
        for r in range(4):
            x = V(4 * t + r)
            a.v("v_dot2_f32_bf16", acc[r], x, sOnes, acc[r])
            a.v("v_dot2_f32_bf16", acc[4 + r], x, x, acc[4 + r])
    a.v("v_add_f32", acc[0], acc[0], acc[1]); a.v("v_add_f32", acc[2], acc[2], acc[3])
    a.v("v_add_f32", acc[4], acc[4], acc[5]); a.v("v_add_f32", acc[6], acc[6], acc[7])
    a.v("v_add_f32", acc[0], acc[0], acc[2]); a.v("v_add_f32", acc[4], acc[4], acc[6])
    a.v("v_mov_b32", acc[1], acc[0]); a.v("v_mov_b32", acc[5], acc[4])
    a.permswap(acc[0], acc[1]); a.permswap(acc[4], acc[5])
    a.v("v_add_f32", acc[0], acc[0], acc[1]); a.v("v_add_f32", acc[4], acc[4], acc[5])
    a.v("v_mul_f32", acc[0], f32(1 / 512), acc[0])
    a.v("v_mul_f32", acc[4], f32(1 / 512), acc[4])
    a.v("v_fma_f32", acc[4], Neg(acc[0]), acc[0], acc[4])
    a.v("v_max_f32", acc[4], 0, acc[4])
    a.v("v_cvt_pk_bf16_f32", acc[1], acc[0], acc[4])
    a.v("v_lshlrev_b32", vM, 16, acc[1])
    a.v("v_and_b32", acc[2], 0xffff0000, acc[1])
    a.v("v_add_f32", acc[2], f32(1e-5), acc[2])
    a.v("v_cvt_pk_bf16_f32", acc[2], acc[2], acc[2])
    a.v("v_and_b32", acc[2], 0xffff0000, acc[2])
    a.v("v_sqrt_f32", acc[2], acc[2])
    a.v("v_cvt_pk_bf16_f32", acc[2], acc[2], acc[2])
    a.v("v_and_b32", acc[2], 0xffff0000, acc[2])
    a.v("v_rcp_f32", vR, acc[2])

    def norm_ops(t):
        chains = []
        for r in range(4):
            x = V(4 * t + r); ta = V(224 + 3 * r); tb = V(225 + 3 * r); tp = V(226 + 3 * r)
            chains.append([
                ("v_lshlrev_b32", ta, 16, x), ("v_and_b32", tb, 0xffff0000, x),
                ("v_sub_f32", ta, ta, vM), ("v_sub_f32", tb, tb, vM),
                ("v_cvt_pk_bf16_f32", tp, ta, tb),
                ("v_lshlrev_b32", ta, 16, tp), ("v_and_b32", tb, 0xffff0000, tp),
                ("v_mul_f32", ta, ta, vR), ("v_mul_f32", tb, tb, vR),
                ("v_cvt_pk_bf16_f32", x, ta, tb)])
        return interleave(*chains)
    def emit(ops):
        for o in ops: a.v(*o)
    emit(norm_ops(0))
    tr_base(vA0, 8, 64, 32)

    def chunk_sync(ci):
        a.wait_vm(f"c{ci}")
        a.barrier()
        if ci + 3 < 16: issue_chunk(ci + 3)

    QACC = [V(128 + 16 * d, 16) for d in range(4)]
    for c in range(4):
        chunk_sync(c)
        if c == 0:
            tr_base(vA1, 4, 1024, 32)
            a.s("s_lshl_b32", sT, sWave, 7)
            a.s("s_add_u32", sT, sT, SIDE)
            a.v("v_add_u32", vA1, sT, vA1)
            for m in range(2):
                for e in range(2):
                    b = V(192 + 16 * m + 4 * e + 8 * 0, 4) if False else V(192 + 8 * m + 4 * e, 4)
                    a.ds_read("ds_read_b64_tr_b16", b.sub(0, 2), vA1, m * 16384 + e * 64)
                    a.ds_read("ds_read_b64_tr_b16", b.sub(2, 2), vA1, m * 16384 + e * 64 + 8 * 1024)
            a.s("s_mul_i32", sT, sWave, 2 * KS_W * 1024)
            a.s("s_lshl_b32", sT2, S(2), 10)
            a.s("s_add_u32", sT, sT, sT2)
            a.s("s_add_u32", sT, sT, WFRAG_OFF)
            a.s("s_add_u32", sT2, sT, KS_W * 1024)
            a.bstore("buffer_store_dwordx4", V(192, 4), vL16, WS_, sT)
            a.bstore("buffer_store_dwordx4", V(196, 4), vL16, WS_, sT2)
            a.s("s_add_u32", sT, sT, 256 * 1024)
            a.s("s_add_u32", sT2, sT2, 256 * 1024)
            a.s("s_cmp_ge_u32", S(2), 86)
            a.s("s_cselect_b32", sT, 0x40000000, sT)
            a.s("s_cselect_b32", sT2, 0x40000000, sT2)
            a.bstore("buffer_store_dwordx4", V(200, 4), vL16, WS_, sT)
            a.bstore("buffer_store_dwordx4", V(204, 4), vL16, WS_, sT2)
        if c == 2: a.v("v_add_u32", vA0, 0x10000, vA0)
        bo = (c % 2) * SLOT
        bufs = [V(208 + 4 * d, 4) for d in range(4)]
        def rd(s_, d):
            for sec in range(2):
                a.ds_read("ds_read_b64_tr_b16", bufs[d].sub(2 * sec, 2), vA0, bo + d * 8192 + (16 * s_ + 4 * sec) * 64)
        for d in range(4): rd(0, d)
        for s_ in range(8):
            t = 8 * c + s_
            nxt = norm_ops(t + 1) if t + 1 < 32 else []
            for d in range(4):
                a.mfma(QACC[d], bufs[d], X(t), 0 if t == 0 else QACC[d])
                if s_ + 1 < 8: rd(s_ + 1, d)
                emit(nxt[10 * d:10 * d + 10])
    for d in range(4):
        for i in range(8):
            a.v("v_cvt_pk_bf16_f32", V(128 + 8 * d + i), V(128 + 16 * d + 2 * i), V(128 + 16 * d + 2 * i + 1))
    for t in range(8):
        a.permswap(V(128 + 4 * t), V(128 + 4 * t + 2))
        a.permswap(V(128 + 4 * t + 1), V(128 + 4 * t + 3))
    Qf = lambda t: V(128 + 4 * t, 4)

    tr_base(vA0, 8, 32, FMAT)
    FACC = [V(160 + 16 * u, 16) for u in range(3)]
    for c in range(4):
        chunk_sync(4 + c)
        if c == 2: a.v("v_add_u32", vA0, 0x10000, vA0)
        bo = (c % 2) * SLOT
        bufs = [[V(208 + 12 * p + 4 * u, 4) for u in range(3)] for p in range(2)]
        def rd(s_, u):
            for sec in range(2):
                a.ds_read("ds_read_b64_tr_b16", bufs[s_ % 2][u].sub(2 * sec, 2), vA0, bo + u * 4096 + (16 * s_ + 4 * sec) * 32)
        for s_ in range(2):
            for u in range(3): rd(s_, u)
        for s_ in range(8):
            t = 8 * c + s_
            for u in range(3):
                a.mfma(FACC[u], bufs[s_ % 2][u], X(t), 0 if t == 0 else FACC[u])
                if s_ + 2 < 8: rd(s_ + 2, u)
    C1 = -2 * (2 / 3.141592653589793) ** 0.5 * LOG2E
    C2 = C1 * 0.044715
    a.s("s_mov_b32", sT3, f32(C2))
    a.s("s_mul_i32", sT, sQblk, 8 * KS_ACT * 1024)
    a.s("s_mul_i32", sT2, sWave, KS_ACT * 1024)
    a.s("s_add_u32", sT, sT, sT2)
    a.s("s_mov_b32", S(84), sT)
    a.s("s_lshl_b32", sT2, sU0, 10)
    a.s("s_add_u32", sT, sT, sT2)
    a.s("s_add_u32", sT, sT, 256 * 1024)
    for u in range(3):
        A = FACC[u]
        chains = []
        for p in range(4):
            g0, g1, u0, u1 = A[2 * p], A[2 * p + 1], A[8 + 2 * p], A[9 + 2 * p]
            t0, t1 = V(208 + 2 * p), V(209 + 2 * p)
            ch = [("v_cvt_pk_bf16_f32", t0, g0, g1), ("v_cvt_pk_bf16_f32", t1, u0, u1),
                  ("v_lshlrev_b32", g0, 16, t0), ("v_and_b32", g1, 0xffff0000, t0),
                  ("v_lshlrev_b32", u0, 16, t1), ("v_and_b32", u1, 0xffff0000, t1),
                  ("v_mul_f32", t0, g0, g0), ("v_mul_f32", t1, g1, g1),
                  ("v_fma_f32", t0, t0, sT3, vT2), ("v_fma_f32", t1, t1, sT3, vT2),
                  ("v_mul_f32", t0, t0, g0), ("v_mul_f32", t1, t1, g1),
                  ("v_exp_f32", t0, t0), ("v_exp_f32", t1, t1),
                  ("v_add_f32", t0, 1.0, t0), ("v_add_f32", t1, 1.0, t1),
                  ("v_rcp_f32", t0, t0), ("v_rcp_f32", t1, t1),
                  ("v_mul_f32", g0, g0, t0), ("v_mul_f32", g1, g1, t1),
                  ("v_cvt_pk_bf16_f32", t0, g0, g1),
                  ("v_lshlrev_b32", g0, 16, t0), ("v_and_b32", g1, 0xffff0000, t0),
                  ("v_mul_f32", g0, g0, u0), ("v_mul_f32", g1, g1, u1),
                  ("v_cvt_pk_bf16_f32", V(216 + 4 * u + p), g0, g1)]
            chains.append(ch)
        if u == 0: a.v("v_mov_b32", vT2, f32(C1))
        emit(interleave(*chains))
        a.bstore("buffer_store_dwordx4", V(216 + 4 * u, 4), vL16, WS_, sT, u * 1024)

    a.v("v_and_b32", vTmp, 31, vLane)
    a.v("v_lshrrev_b32", vT2, 5, vLane)
    a.v("v_bfe_u32", vT3, vLane, 2, 2)
    a.v("v_xor_b32", vT2, vT2, vT3)
    a.v("v_lshlrev_b32", vT2, 4, vT2)
    a.v("v_lshl_add_u32", vA0, vTmp, 6, vT2)
    a.v("v_xor_b32", vA1, 32, vA0)
    SACC = [V(160, 16), V(176, 16)]
    vMax = vS0
    a.v("v_mov_b32", vMax, 0xff800000)
    def post_ops(n):
        A = SACC[n % 2]
        ops = []
        chains = []
        for p in range(8):
            d = V(8 * n + p); ta = V(192 + 2 * (p % 4)); tb = V(193 + 2 * (p % 4))
            chains.append([("v_max3_f32", vMax, A[2 * p], A[2 * p + 1], vMax),
                           ("v_cvt_pk_bf16_f32", d, A[2 * p], A[2 * p + 1]),
                           ("v_lshlrev_b32", ta, 16, d), ("v_and_b32", tb, 0xffff0000, d),
                           ("v_mul_f32", ta, sSc, ta), ("v_mul_f32", tb, sSc, tb),
                           ("v_cvt_pk_bf16_f32", d, ta, tb)])
        return interleave(*chains[:4]) + interleave(*chains[4:])
    for c in range(4):
        chunk_sync(8 + c)
        if c == 2:
            a.v("v_add_u32", vA0, 0x10000, vA0); a.v("v_add_u32", vA1, 0x10000, vA1)
        bo = (c % 2) * SLOT
        bufs = [V(208 + 4 * t, 4) for t in range(8)]
        def rd(kt, t):
            a.ds_read("ds_read_b128", bufs[t], vA1 if t & 1 else vA0, bo + (t >> 1) * 8192 + kt * 2048)
        for t in range(8): rd(0, t)
        for kt in range(4):
            n = 4 * c + kt
            po = post_ops(n - 1) if n > 0 else []
            for t in range(8):
                a.mfma(SACC[n % 2], bufs[t], Qf(t), 0 if t == 0 else SACC[n % 2])
                if kt + 1 < 4: rd(kt + 1, t)
                if t >= 4: emit(po[14 * (t - 4):14 * (t - 3)])
    emit(post_ops(15))
    a.v("v_mov_b32", vT2, vMax)
    a.permswap(vMax, vT2)
    a.v("v_max_f32", vMax, vMax, vT2)
    a.v("v_cvt_pk_bf16_f32", vT2, vMax, vMax)
    a.v("v_and_b32", vT2, 0xffff0000, vT2)
    a.v("v_mul_f32", vT2, sSc, vT2)
    a.v("v_cvt_pk_bf16_f32", vT2, vT2, vT2)
    a.v("v_and_b32", vT2, 0xffff0000, vT2)
    a.v("v_mul_f32", vM, sL2E, vT2)
    a.v("v_mov_b32", vS0, 0); a.v("v_mov_b32", vS1, 0)

    tr_base(vA0, 4, 64, 32)
    OACC = [V(128 + 16 * d, 16) for d in range(4)]
    def p_ops(n):
        chains = []
        for p in range(8):
            R = V(8 * n + p); ta = V(224 + 2 * (p % 4)); tb = V(225 + 2 * (p % 4))
            chains.append([("v_lshlrev_b32", ta, 16, R), ("v_and_b32", tb, 0xffff0000, R),
                           ("v_fma_f32", ta, ta, sL2E, Neg(vM)), ("v_fma_f32", tb, tb, sL2E, Neg(vM)),
                           ("v_exp_f32", ta, ta), ("v_exp_f32", tb, tb),
                           ("v_add_f32", vS0, vS0, ta), ("v_add_f32", vS1, vS1, tb),
                           ("v_cvt_pk_bf16_f32", R, ta, tb)])
        return interleave(*chains[:4]) + interleave(*chains[4:])
    emit(p_ops(0))
    NB = 6
    for c in range(4):
        chunk_sync(12 + c)
        if c == 2: a.v("v_add_u32", vA0, 0x10000, vA0)
        bo = (c % 2) * SLOT
        bufs = [V(192 + 4 * i, 4) for i in range(NB)]
        def rd(m):
            kt, half, dt = m // 8, (m // 4) % 2, m % 4
            for sec in range(2):
                a.ds_read("ds_read_b64_tr_b16", bufs[m % NB].sub(2 * sec, 2), vA0, bo + dt * 8192 + (32 * kt + 16 * half + 8 * sec) * 64)
        for m in range(NB): rd(m)
        for kt in range(4):
            n = 4 * c + kt
            po = p_ops(n + 1) if n + 1 < 16 else []
            for i in range(8):
                m = kt * 8 + i
                half, dt = i // 4, i % 4
                a.mfma(OACC[dt], bufs[m % NB], V(8 * n + 4 * half, 4), 0 if (n == 0 and half == 0) else OACC[dt])
                if m + NB < 32: rd(m + NB)
                emit(po[9 * i:9 * i + 9])
    a.v("v_add_f32", vS0, vS0, vS1)
    a.v("v_mov_b32", vS1, vS0)
    a.permswap(vS0, vS1)
    a.v("v_add_f32", vS0, vS0, vS1)
    a.v("v_rcp_f32", vR, vS0)
    a.s("s_lshl_b32", sT, sHead, 13)
    a.s("s_add_u32", sT, sT, S(84))
    a.s("s_add_u32", sT2, sT, 4096)
    for d in range(4):
        for r in range(16):
            a.v("v_mul_f32", OACC[d][r], OACC[d][r], vR)
        for i in range(8):
            a.v("v_cvt_pk_bf16_f32", V(8 * d + i), OACC[d][2 * i], OACC[d][2 * i + 1])
        for hf in range(2):
            t = 2 * d + hf
            a.bstore("buffer_store_dwordx4", V(8 * d + 4 * hf, 4), vL16, WS_, sT if t < 4 else sT2, (t % 4) * 1024)
    a.label("L_attn_end")
    a.raw("s_endpgm", "end")
    return a.text()

def gen_final():
    a = Asm()
    sWave, sQb, sNb, sT, sT2, sA0, sA1, sW0, sW1, sLast = [S(i) for i in range(4, 14)]
    WS_, X_, O_ = S(40, 4), S(44, 4), S(48, 4)
    vLane, vL16, vTmp, vT2 = V(240), V(241), V(242), V(243)
    a.s("s_cmp_ge_u32", S(2), 256)
    a.raw("s_cbranch_scc1 L_fin_end", "branch")
    a.smem("s_load_dwordx2", S(16, 2), S(0, 2), 0)
    a.smem("s_load_dwordx2", S(18, 2), S(0, 2), 72)
    a.smem("s_load_dwordx2", S(20, 2), S(0, 2), 88)
    a.v("v_and_b32", vLane, 63, V(0))
    a.v("v_lshrrev_b32", vTmp, 6, V(0))
    a.v("v_readfirstlane_b32", sWave, vTmp)
    a.v("v_mov_b32", V(244), V(0))
    a.v("v_lshlrev_b32", vL16, 4, vLane)
    a.s("s_and_b32", sT, S(2), 7)
    a.s("s_lshr_b32", sT2, S(2), 3)
    a.s("s_and_b32", sQb, sT, 3); a.s("s_lshl_b32", sQb, sQb, 3)
    a.s("s_and_b32", sNb, sT2, 7); a.s("s_add_u32", sQb, sQb, sNb)
    a.s("s_lshr_b32", sNb, sT, 2); a.s("s_lshl_b32", sNb, sNb, 2)
    a.s("s_lshr_b32", sT2, sT2, 3); a.s("s_add_u32", sNb, sNb, sT2)
    a.s("s_mul_i32", sT, sWave, 43)
    a.s("s_cmp_ge_u32", sWave, 5); a.s("s_cselect_b32", sT2, 1, 0); a.s("s_sub_u32", sT, sT, sT2)
    a.s("s_cmp_ge_u32", sWave, 6); a.s("s_cselect_b32", sT2, 1, 0); a.s("s_sub_u32", sT, sT, sT2)
    a.s("s_lshl_b32", sT, sT, 10)
    a.s("s_mul_i32", sA0, sQb, 2 * KS_ACT * 1024); a.s("s_add_u32", sA0, sA0, sT)
    a.s("s_add_u32", sA1, sA0, KS_ACT * 1024)
    a.s("s_mul_i32", sW0, sNb, 2 * KS_W * 1024); a.s("s_add_u32", sW0, sW0, sT); a.s("s_add_u32", sW0, sW0, WFRAG_OFF)
    a.s("s_add_u32", sW1, sW0, KS_W * 1024)
    a.s("s_sub_u32", sT, sWave, 4); a.s("s_cmp_lt_u32", sT, 2); a.s("s_cselect_b32", sLast, 0x40000000, 0)
    a.raw("s_waitcnt lgkmcnt(0)")
    srd(a, X_, S(16), S(17), 2097152)
    srd(a, O_, S(18), S(19), 2097152)
    srd(a, WS_, S(20), S(21), 268435456)
    D = 8
    ACC = [[V(16 * (2 * nt + qt), 16) for qt in range(2)] for nt in range(2)]
    st = lambda k: [V(64 + 16 * (k % D) + 4 * i, 4) for i in range(4)]
    def load(k):
        if k and k % 4 == 0:
            for r in (sA0, sA1, sW0, sW1): a.s("s_add_u32", r, r, 4096)
        if k == 42:
            a.s("s_add_u32", sW0, sW0, sLast); a.s("s_add_u32", sW1, sW1, sLast)
        b = st(k)
        for i, r in enumerate((sA0, sA1, sW0, sW1)):
            a.bload("buffer_load_dwordx4", b[i], vL16, WS_, r, (k % 4) * 1024)
    for k in range(D): load(k)
    for k in range(43):
        b = st(k)
        for nt in range(2):
            for qt in range(2):
                a.mfma(ACC[nt][qt], b[2 + nt], b[qt], 0 if k == 0 else ACC[nt][qt])
        if k + D < 43: load(k + D)
    a.s("s_mul_i32", sT, sWave, 16 * 1040)
    a.v("v_add_u32", vTmp, sT, vL16)
    for nt in range(2):
        for qt in range(2):
            for q4 in range(4):
                blk = (nt * 2 + qt) * 4 + q4
                a.ds_write("ds_write_b128", vTmp, ACC[nt][qt].sub(4 * q4, 4), blk * 1040)
    tid = V(244)
    a.v("v_lshrrev_b32", vTmp, 3, tid)
    a.v("v_and_b32", vT2, 7, tid)
    a.s("s_lshl_b32", sT, sQb, 16); a.s("s_lshl_b32", sT2, sNb, 7); a.s("s_add_u32", sT, sT, sT2)
    a.v("v_lshlrev_b32", V(245), 10, vTmp)
    a.v("v_lshl_add_u32", V(245), vT2, 4, V(245))
    a.v("v_add_u32", V(245), sT, V(245))
    a.bload("buffer_load_dwordx4", V(232, 4), V(245), X_, 0, 0)
    a.v("v_lshrrev_b32", V(246), 2, vT2)
    a.v("v_lshlrev_b32", V(246), 1, V(246))
    a.v("v_lshrrev_b32", V(247), 5, vTmp)
    a.v("v_add_u32", V(246), V(246), V(247))
    a.v("v_lshlrev_b32", V(246), 2, V(246))
    a.v("v_and_b32", V(247), 3, vT2)
    a.v("v_add_u32", V(246), V(246), V(247))
    a.v("v_mul_u32_u24", V(246), 1040, V(246))
    a.v("v_and_b32", V(247), 31, vTmp)
    a.v("v_lshl_add_u32", V(246), V(247), 4, V(246))
    a.v("v_add_u32", V(247), 0x10000, V(246))
    a.wait_lgkm0()
    a.barrier()
    for w in range(8):
        for hh in range(2):
            off = w * 16 * 1040 + hh * 512
            if off < 65536: a.ds_read("ds_read_b128", V(8 * w + 4 * hh, 4), V(246), off)
            else: a.ds_read("ds_read_b128", V(8 * w + 4 * hh, 4), V(247), off - 65536)
    for e in range(8):
        a.v("v_add_f32", V(e), V(e), V(8 + e)); a.v("v_add_f32", V(16 + e), V(16 + e), V(24 + e))
        a.v("v_add_f32", V(32 + e), V(32 + e), V(40 + e)); a.v("v_add_f32", V(48 + e), V(48 + e), V(56 + e))
    for e in range(8):
        a.v("v_add_f32", V(e), V(e), V(16 + e))
    for e in range(8):
        a.v("v_add_f32", V(e), V(e), V(32 + e))
    a.s("s_mov_b32", sT, f32(-LOG2E))
    chains = []
    for p in range(4):
        s0, s1, d0, d1 = V(2 * p), V(2 * p + 1), V(48 + 2 * p), V(49 + 2 * p)
        t0, t1, x0, x1 = V(64 + 4 * p), V(65 + 4 * p), V(66 + 4 * p), V(67 + 4 * p)
        xin = V(232 + p)
        chains.append([("v_cvt_pk_bf16_f32", t0, s0, s1), ("v_cvt_pk_bf16_f32", t1, d0, d1),
                       ("v_lshlrev_b32", s0, 16, t0), ("v_and_b32", s1, 0xffff0000, t0),
                       ("v_lshlrev_b32", d0, 16, t1), ("v_and_b32", d1, 0xffff0000, t1),
                       ("v_mul_f32", t0, sT, d0), ("v_mul_f32", t1, sT, d1),
                       ("v_exp_f32", t0, t0), ("v_exp_f32", t1, t1),
                       ("v_add_f32", t0, 1.0, t0), ("v_add_f32", t1, 1.0, t1),
                       ("v_rcp_f32", t0, t0), ("v_rcp_f32", t1, t1),
                       ("v_mul_f32", d0, d0, t0), ("v_mul_f32", d1, d1, t1),
                       ("v_cvt_pk_bf16_f32", t0, d0, d1),
                       ("v_lshlrev_b32", d0, 16, t0), ("v_and_b32", d1, 0xffff0000, t0),
                       ("v_mul_f32", s0, s0, d0), ("v_mul_f32", s1, s1, d1),
                       ("v_cvt_pk_bf16_f32", t0, s0, s1),
                       ("v_lshlrev_b32", s0, 16, t0), ("v_and_b32", s1, 0xffff0000, t0),
                       ("v_lshlrev_b32", x0, 16, xin), ("v_and_b32", x1, 0xffff0000, xin),
                       ("v_add_f32", s0, s0, x0), ("v_add_f32", s1, s1, x1),
                       ("v_cvt_pk_bf16_f32", V(96 + p), s0, s1)])
    for o in interleave(*chains): a.v(*o)
    a.bstore("buffer_store_dwordx4", V(96, 4), V(245), O_, 0, 0)
    a.label("L_fin_end")
    a.raw("s_endpgm", "end")
    return a.text()

HEADER = open("recurrent_scan__sliding_block_cached__geglu_ffn__prompt.s.ref").read().split("; Override launch")[0]

def kd(name, vg=256):
    return f""".section .rodata,"a"
.p2align 6
.amdhsa_kernel {name}
  .amdhsa_next_free_vgpr {vg}
  .amdhsa_next_free_sgpr 102
  .amdhsa_accum_offset {vg}
  .amdhsa_group_segment_fixed_size 0
  .amdhsa_kernarg_size 96
  .amdhsa_user_sgpr_count 2
  .amdhsa_user_sgpr_kernarg_segment_ptr 1
  .amdhsa_system_sgpr_workgroup_id_x 1
.end_amdhsa_kernel
"""

def main():
    out = HEADER
    out += "; @launch kernel=attn_kernel grid=(256,1,1) block=(512,1,1) lds=163840\n"
    out += "; @launch kernel=final_kernel grid=(256,1,1) block=(512,1,1) lds=133120\n"
    out += '.amdgcn_target "amdgcn-amd-amdhsa--gfx950"\n.text\n'
    for name, g in (("attn_kernel", gen_attn), ("final_kernel", gen_final)):
        out += f".globl {name}\n.p2align 8\n.type {name},@function\n{name}:\n" + g()
    out += kd("attn_kernel") + kd("final_kernel")
    dst = sys.argv[1] if len(sys.argv) > 1 else "recurrent_scan__sliding_block_cached__geglu_ffn__prompt.s"
    open(dst, "w").write(out)
    print("wrote", dst, len(out), "bytes", out.count("\n"), "lines")
main()
```

```python
import struct

class V:
    def __init__(s, i, n=1): s.i, s.n = i, n
    def __str__(s): return f"v{s.i}" if s.n == 1 else f"v[{s.i}:{s.i+s.n-1}]"
    def regs(s): return set(range(s.i, s.i + s.n))
    def __getitem__(s, k): return V(s.i + k)
    def sub(s, k, n): return V(s.i + k, n)

class S:
    def __init__(s, i, n=1): s.i, s.n = i, n
    def __str__(s): return f"s{s.i}" if s.n == 1 else f"s[{s.i}:{s.i+s.n-1}]"
    def regs(s): return set(range(s.i, s.i + s.n))
    def __getitem__(s, k): return S(s.i + k)

class Neg:
    def __init__(s, r): s.r = r
    def __str__(s): return "-" + str(s.r)

class Sp:
    def __init__(s, name): s.name = name
    def __str__(s): return s.name
VCC = Sp("vcc"); EXEC = Sp("exec"); M0 = Sp("m0")

def f32(x):
    return "0x%08x" % struct.unpack("<I", struct.pack("<f", x))[0]

TRANS = ("v_exp_f32", "v_rcp_f32", "v_rsq_f32", "v_sqrt_f32", "v_log_f32")

class Ins:
    def __init__(s, text, kind):
        s.text = text; s.kind = kind
        s.vr = set(); s.vw = set(); s.sr = set(); s.sw = set()
        s.op = text.split()[0]
        s.srcc = None
        s.ab = set()
        s.d = None
        s.tag = None
        s.states = 1

class Asm:
    def __init__(s):
        s.ins = []
    def _add(s, op, dsts, srcs, kind, mods=""):
        ops = list(dsts) + list(srcs)
        text = op + " " + ", ".join(str(o) for o in ops)
        if mods: text += " " + mods
        I = Ins(text, kind)
        for d in dsts:
            if isinstance(d, V): I.vw |= d.regs()
            elif isinstance(d, S): I.sw |= d.regs()
            elif isinstance(d, Sp): I.sw.add(d.name)
        for o in srcs:
            if isinstance(o, Neg): o = o.r
            if isinstance(o, V): I.vr |= o.regs()
            elif isinstance(o, S): I.sr |= o.regs()
            elif isinstance(o, Sp): I.sr.add(o.name)
        s.ins.append(I)
        return I
    def raw(s, text, kind="salu"):
        I = Ins(text, kind); s.ins.append(I); return I
    def label(s, name):
        I = Ins(name + ":", "label"); I.states = 0; s.ins.append(I)
    def comment(s, c):
        I = Ins("; " + c, "comment"); I.states = 0; s.ins.append(I)
    def v(s, op, dst, *srcs, mods=""):
        if op.startswith("v_mfma"): raise Exception("use mfma")
        kind = "valu"
        if op in TRANS: kind = "trans"
        if op.startswith("v_dot"): kind = "dot"
        if op.startswith("v_readfirstlane") or op.startswith("v_readlane"): kind = "readlane"
        I = s._add(op, [dst], srcs, kind, mods)
        if op.startswith("v_fmac") or op.startswith("v_dot2c"): I.vr |= dst.regs()
        if op.startswith("v_cndmask") and len(srcs) == 2: I.sr.add("vcc")
        return I
    def permswap(s, a, b):
        I = s._add("v_permlane32_swap_b32", [a], [b], "permlane")
        I.vr |= a.regs(); I.vw |= b.regs()
        return I
    def mfma(s, d, a, b, c):
        I = s._add("v_mfma_f32_32x32x16_bf16", [d], [a, b, c], "mfma")
        I.ab = a.regs() | b.regs()
        I.d = (d.i, d.n)
        if isinstance(c, V): I.srcc = (c.i, c.n)
        return I
    def s(s_, op, dst, *srcs):
        if op.startswith("s_cmp"):
            return s_._add(op, [], [dst] + list(srcs), "salu")
        return s_._add(op, [dst], srcs, "salu")
    def smem(s, op, dst, base, off):
        return s._add(op, [dst], [base, off], "smem")
    def ds_read(s, op, dst, addr, off=0):
        assert 0 <= off < 65536, off
        import sys
        if "--nolds" in sys.argv and getattr(s, "nolds_on", False): return None
        return s._add(op, [dst], [addr], "ldsr", f"offset:{off}" if off else "")
    def ds_write(s, op, addr, data, off=0):
        assert 0 <= off < 65536, off
        return s._add(op, [], [addr, data], "ldsw", f"offset:{off}" if off else "")
    def bload(s, op, dst, voff, srd, soff=0, off=0, tag=None, extra=""):
        assert 0 <= off < 4096
        I = s._add(op, [dst], [voff, srd, soff], "vload", ("offen" + (f" offset:{off}" if off else "") + (" " + extra if extra else "")))
        I.tag = tag; return I
    def dma(s, voff, srd, soff=0, off=0, tag=None, extra="", cond=False):
        assert 0 <= off < 4096
        I = s._add("buffer_load_dwordx4", [], [voff, srd, soff], "dma", "offen" + (f" offset:{off}" if off else "") + " lds" + (" " + extra if extra else ""))
        I.sr.add("m0")
        I.tag = tag; I.cond = cond; return I
    def bstore(s, op, data, voff, srd, soff=0, off=0, tag=None, extra=""):
        assert 0 <= off < 4096
        I = s._add(op, [], [data, voff, srd, soff], "vstore", "offen" + (f" offset:{off}" if off else "") + (" " + extra if extra else ""))
        I.data = data.regs(); I.wide = data.n >= 3
        I.tag = tag; return I
    def wait_vm(s, tag):
        I = Ins("WAITVM", "waitvm"); I.tag = tag; I.states = 0; s.ins.append(I)
    def wait_lgkm0(s):
        I = Ins("WAITLGKM0", "waitlgkm0"); I.states = 0; s.ins.append(I)
    def barrier(s):
        s.raw("s_barrier", "barrier")
    def nop(s, n):
        I = s.raw(f"s_nop {n}", "nop"); I.states = n + 1

    def insert_waits(s):
        out = []
        lq = []
        vq = []
        def emit_wait(vm=None, lg=None):
            t = "s_waitcnt"
            if vm is not None: t += f" vmcnt({vm})"
            if lg is not None: t += f" lgkmcnt({lg})"
            out.append(Ins(t, "wait"))
        for I in s.ins:
            if I.kind == "waitvm":
                idx = max([k for k, e in enumerate(vq) if e[1] == I.tag], default=-1)
                if idx >= 0:
                    n = len(vq) - idx - 1
                    if not vq[idx][2]: n = sum(1 for e in vq[idx + 1:] if not e[2])
                    assert n <= 63
                    emit_wait(vm=n); del vq[:idx + 1]
                continue
            if I.kind == "waitlgkm0":
                if lq: emit_wait(lg=0); lq.clear()
                continue
            if I.kind in ("label", "comment"):
                out.append(I); continue
            regs = I.vr | I.vw
            vmn = lgn = None
            idx = max([k for k, e in enumerate(lq) if e & regs], default=-1)
            if idx >= 0:
                lgn = len(lq) - idx - 1; del lq[:idx + 1]
            idx = max([k for k, e in enumerate(vq) if e[0] & regs], default=-1)
            if idx >= 0:
                vmn = sum(1 for e in vq[idx + 1:] if not e[2]); del vq[:idx + 1]
                assert vmn <= 63
            if I.kind in ("ldsr", "ldsw") and len(lq) >= 15:
                k = len(lq) - 14
                lgn = min(lgn, 14) if lgn is not None else 14
                del lq[:k]
            if I.kind in ("vload", "dma", "vstore") and len(vq) >= 62:
                k = len(vq) - 61
                vmn = min(vmn, 61) if vmn is not None else 61
                del vq[:k]
            if vmn is not None or lgn is not None: emit_wait(vmn, lgn)
            out.append(I)
            if I.kind == "ldsr": lq.append(set(I.vw))
            elif I.kind == "ldsw": lq.append(set())
            elif I.kind == "vload": vq.append((set(I.vw), I.tag, False))
            elif I.kind in ("dma", "vstore"): vq.append((set(), I.tag, getattr(I, "cond", False)))
        s.ins = out

    def fix_hazards(s):
        out = []
        VAL = ("valu", "trans", "dot", "permlane", "readlane")
        def need(P, C):
            n = 0
            pk, ck = P.kind, C.kind
            if pk in VAL:
                if ck == "mfma" and (P.vw & C.vr): n = max(n, 2)
                if ck == "permlane" and (P.vw & C.vr): n = max(n, 2)
                if ck == "readlane" and (P.vw & C.vr): n = max(n, 1)
                if pk == "trans" and ck in VAL and ck != "trans" and (P.vw & C.vr): n = max(n, 1)
                if pk == "dot" and ck in VAL + ("mfma", "vstore", "ldsw", "vload", "ldsr", "dma") and (P.vw & (C.vr | C.vw)):
                    n = max(n, 0 if (C.op == P.op and False) else 3)
                if P.sw:
                    if ck in VAL + ("mfma",) and (P.sw & C.sr): n = max(n, 2)
                    if ck in ("vload", "vstore", "dma") and (P.sw & C.sr): n = max(n, 5)
                    if ck in ("salu",) and (P.sw & C.sr): n = max(n, 2)
            if pk == "mfma":
                D = set(range(P.d[0], P.d[0] + P.d[1]))
                if ck == "mfma":
                    if D & C.ab: n = max(n, 12)
                    if C.srcc is not None:
                        cs = set(range(C.srcc[0], C.srcc[0] + C.srcc[1]))
                        if cs & D and C.srcc != P.d: n = max(n, 10)
                elif ck in VAL + ("vstore", "ldsw", "vload", "ldsr", "dma"):
                    if D & (C.vr | C.vw): n = max(n, 12)
                if P.srcc is not None and ck in VAL:
                    cs = set(range(P.srcc[0], P.srcc[0] + P.srcc[1]))
                    if cs & C.vw: n = max(n, 7)
            if pk == "salu" and "m0" in P.sw and ck == "dma": n = max(n, 1)
            if pk == "vstore" and getattr(P, "wide", False):
                if P.data & C.vw: n = max(n, 2)
            return n
        for I in s.ins:
            if I.kind in ("label", "comment"):
                out.append(I); continue
            req = 0
            dist = 0
            for P in reversed(out[-40:]):
                if P.kind in ("label", "comment"): continue
                nd = need(P, I)
                if nd > dist: req = max(req, nd - dist)
                dist += P.states
                if dist > 24: break
            while req > 0:
                k = min(req, 16)
                N = Ins(f"s_nop {k-1}", "nop"); N.states = k; out.append(N); req -= k
            out.append(I)
        s.ins = out

    def text(s):
        s.insert_waits(); s.fix_hazards()
        lines = []
        for I in s.ins:
            if I.kind == "label": lines.append(I.text)
            else: lines.append("    " + I.text)
        return "\n".join(lines) + "\n"
```

```python
import sys
from asmlib import *
KS_ACT = 344
KS_W = 342
WFRAG_OFF = 32 << 20
SLOT = 32768
SIDE = 131072
FMAT = 12416
LOG2E = 1.4426950408889634
SCALE = 128 ** -0.5

def srd(a, dst, lo, hi, size):
    a.s("s_mov_b32", dst[0], lo)
    a.s("s_and_b32", dst[1], hi, 0xffff)
    a.s("s_mov_b32", dst[2], size)
    a.s("s_mov_b32", dst[3], 0x00020000)

def interleave(*lists):
    out = []
    n = max(len(l) for l in lists)
    for i in range(n):
        for l in lists:
            if i < len(l): out.append(l[i])
    return out

STAMP = "--stamp" in sys.argv
FINE = "--fine" in sys.argv
XNODMA = "--nodma" in sys.argv
XNOBAR = "--nobar" in sys.argv
XNOEXP = "--noexp" in sys.argv
XNOLDS = "--nolds" in sys.argv
stamp_names = []
def stamp(a, name, WS=None, real=False):
    if not STAMP: return
    i = len(stamp_names); stamp_names.append(name)
    a.wait_lgkm0()
    a.raw("s_memrealtime s[86:87]" if real else "s_memtime s[86:87]", "smem")
    a.raw("s_waitcnt lgkmcnt(0)")
    a.v("v_mov_b32", V(255), S(86))
    I = a.raw(f"buffer_store_dword v255, off, {WS}, s88 offset:{4*i}", "vstore")
    I.vr = {255}; I.data = {255}; I.wide = False
def stamp_init(a, sWave):
    if not STAMP: return
    a.s("s_lshl_b32", S(88), S(2), 3)
    a.s("s_add_u32", S(88), S(88), sWave)
    a.s("s_lshl_b32", S(88), S(88), 9)
    a.s("s_add_u32", S(88), S(88), 128 << 20)
```

```python
import sys
from asmlib import *
from common import *
from gen3_ln import XN_OFF

def gen_attn():
    a = Asm()
    sWave, sHead, sQblk, sU0, sT, sT2, sM0b, sFb, sOnes, sL2E = [S(i) for i in range(4, 14)]
    sT3 = S(15); sKVb = S(89); sThr = S(90); sD = S(91); sAct = S(84)
    X_, K_, WQ_, WO_, WD_, WS_, WG_, V_, WU_ = [S(40 + 4 * i, 4) for i in range(9)]
    vDV = V(251)
    vLane, vL16, vDW, vDF, vDK = V(240), V(241), V(242), V(243), V(244)
    vM, vR = V(245), V(246)
    B0, B1, B2, B3 = V(247), V(248), V(249), V(250)
    vTmp, vT2, vT3 = V(252), V(253), V(254)
    X = lambda t: V(4 * t, 4)
    NB = 8
    pool = [V(208 + 4 * i, 4) for i in range(NB)]

    a.s("s_cmp_ge_u32", S(2), 256)
    a.raw("s_cbranch_scc1 L_attn_end", "branch")
    a.smem("s_load_dwordx16", S(16, 16), S(0, 2), 0)
    a.smem("s_load_dwordx8", S(32, 8), S(0, 2), 64)
    a.v("v_and_b32", vLane, 63, V(0))
    a.v("v_lshrrev_b32", vTmp, 6, V(0))
    a.v("v_readfirstlane_b32", sWave, vTmp)
    a.s("s_and_b32", sT, S(2), 7)
    a.s("s_lshr_b32", sT2, S(2), 3)
    a.s("s_lshl_b32", sHead, sT, 2)
    a.s("s_and_b32", sT, sT2, 3)
    a.s("s_add_u32", sHead, sHead, sT)
    a.s("s_lshr_b32", sQblk, sT2, 2)
    a.s("s_mul_i32", sT, sHead, 3)
    a.s("s_lshl_b32", sT2, sHead, 1)
    a.s("s_add_u32", sT2, sT2, 22)
    a.s("s_min_u32", sU0, sT, sT2)
    a.s("s_mov_b32", sOnes, 0x3f803f80)
    a.s("s_mov_b32", sL2E, f32(LOG2E * SCALE))
    a.s("s_lshl_b32", sM0b, sWave, 10)
    a.v("v_lshlrev_b32", vL16, 4, vLane)
    a.v("v_lshrrev_b32", vTmp, 5, vLane)
    a.v("v_and_b32", vT2, 31, vLane)
    a.v("v_xor_b32", vT2, vT2, vTmp)
    a.v("v_lshlrev_b32", vT2, 4, vT2)
    a.v("v_lshl_add_u32", V(224), vTmp, 10, vT2)
    for i in range(1, 8): a.v("v_xor_b32", V(224 + i), 32 * i, V(224))
    a.s("s_lshl_b32", sT, sQblk, 8)
    a.s("s_lshl_b32", sT2, sWave, 5)
    a.s("s_add_u32", sT, sT, sT2)
    a.s("s_lshl_b32", S(85), sT, 10)
    a.s("s_lshl_b32", S(83), sWave, 14)
    a.s("s_add_u32", S(83), S(83), 32768)
    a.raw("s_waitcnt lgkmcnt(0)")
    srd(a, X_, S(16), S(17), 2097152)
    def x_round(rd):
        for n in range(16):
            a.s("s_add_u32", sT, S(85), n * 2048)
            a.s("s_add_u32", M0, S(83), n * 1024 - rd * 512)
            a.dma(V(224 + (n & 7)), X_, sT, rd * 512, tag=f"x{rd}")
    x_round(0)
    a.s("s_and_b32", sT3, sWave, 3)
    a.s("s_lshl_b32", sT, sT3, 5)
    a.v("v_lshrrev_b32", vTmp, 2, vLane)
    a.v("v_add_u32", vTmp, sT, vTmp)
    a.v("v_and_b32", vT2, 3, vLane)
    a.v("v_lshlrev_b32", vT3, 4, vT2)
    a.v("v_lshl_add_u32", vDW, vTmp, 13, vT3)
    a.s("s_lshl_b32", sT, sT3, 4)
    a.v("v_lshrrev_b32", vTmp, 2, vLane)
    a.v("v_add_u32", vTmp, sT, vTmp)
    a.v("v_lshl_add_u32", vDV, vTmp, 8, vT3)
    a.v("v_bfe_u32", vT3, vLane, 4, 2)
    a.v("v_xor_b32", vT3, vT3, vT2)
    a.v("v_lshlrev_b32", vT3, 4, vT3)
    a.v("v_lshl_add_u32", vDK, vTmp, 8, vT3)
    a.s("s_lshl_b32", sT2, sT3, 5)
    a.v("v_lshrrev_b32", vTmp, 1, vLane)
    a.v("v_add_u32", vTmp, sT2, vTmp)
    a.s("s_mov_b32", sT, 2752)
    a.v("v_mul_lo_u32", vTmp, vTmp, sT)
    a.v("v_and_b32", vT2, 1, vLane)
    a.v("v_lshl_add_u32", vDF, vT2, 4, vTmp)
    a.s("s_lshl_b32", sFb, sT3, 10)
    a.s("s_lshl_b32", sM0b, sT3, 11)
    a.s("s_mul_i32", sT, sHead, 524288)
    a.s("s_add_u32", sT, sT, 393216)
    a.s("s_add_u32", S(80), S(18), sT); a.s("s_addc_u32", S(81), S(19), 0)
    srd(a, K_, S(80), S(81), 131072)
    a.s("s_add_u32", S(80), S(20), sT); a.s("s_addc_u32", S(81), S(21), 0)
    srd(a, V_, S(80), S(81), 131072)
    a.s("s_lshl_b32", sT, sHead, 8)
    a.s("s_add_u32", S(80), S(22), sT); a.s("s_addc_u32", S(81), S(23), 0)
    a.s("s_sub_u32", S(82), 4194304, sT)
    srd(a, WQ_, S(80), S(81), S(82))
    srd(a, WO_, S(24), S(25), 4194304)
    srd(a, WD_, S(32), S(33), 1409024)
    srd(a, WS_, S(38), S(39), 268435456)
    srd(a, WG_, S(28), S(29), 1409024)
    srd(a, WU_, S(30), S(31), 1409024)
    a.s("s_mul_i32", sT, sQblk, 8 * KS_ACT * 1024)
    a.s("s_mul_i32", sT2, sWave, KS_ACT * 1024)
    a.s("s_add_u32", sAct, sT, sT2)
    stamp_init(a, sWave)
    stamp(a, 'start', WS_); stamp(a, 'RTstart', WS_, True)

    lab = [0]
    def condgroup(fs):
        def g():
            lab[0] += 1
            a.s("s_cmp_ge_u32", sWave, 4)
            a.raw(f"s_cbranch_scc1 L_nd{lab[0]}", "branch")
            for f in fs: f()
            a.label(f"L_nd{lab[0]}")
        return g
    def chunk_groups(ci):
        ty, c = ci // 4, ci % 4
        slot = (ci % 4) * SLOT
        tag = f"c{ci}"
        G = []
        if ty == 1:
            for m, rs in ((0, WG_), (1, WU_)):
                for j in range(3):
                    def g(j=j, m=m, rs=rs):
                        a.s("s_lshl_b32", sD, sU0, 5)
                        a.s("s_add_u32", sD, sD, c * 128 * 2752)
                        a.s("s_add_u32", M0, sFb, slot + m * FMAT + j * 4096 - j * 32)
                        a.dma(vDF, rs, sD, j * 32, tag=tag, cond=True)
                    G.append(g)
        elif ty == 0:
            for rg in range(2):
                for j in range(4):
                    def g(j=j, rg=rg):
                        a.s("s_mov_b32", sD, c * 128 * 8192 + rg * 16 * 8192)
                        a.s("s_add_u32", M0, sM0b, slot + rg * 1024 + j * 8192 - j * 64)
                        a.dma(vDW, WQ_, sD, j * 64, tag=tag, cond=True)
                    G.append(g)
        else:
            for m, (vo, rs) in enumerate(((vDK, K_), (vDV, V_))):
                for j in range(4):
                    def g(j=j, m=m, vo=vo, rs=rs):
                        a.s("s_mov_b32", sD, (ci - 8) * 16384)
                        a.s("s_add_u32", M0, sFb, slot + m * 16384 + j * 4096 - j * 64)
                        a.dma(vo, rs, sD, j * 64, tag=tag, cond=True)
                    G.append(g)
        return [condgroup(G[i:i + 2]) for i in range(0, len(G), 2)]
    def side_groups():
        G = []
        for m, rs in ((0, WO_), (1, WD_)):
            for e in range(2):
                def g(m=m, rs=rs, e=e):
                    a.s("s_lshl_b32", sD, sWave, 11)
                    a.s("s_add_u32", M0, sD, SIDE + m * 16384)
                    a.s("s_lshl_b32", sT3, S(2), 14)
                    a.s("s_add_u32", sD, sD, sT3)
                    a.dma(vL16, rs, sD, e * 1024, tag="side")
                G.append(g)
        return G
    for g in chunk_groups(0): g()
    issued = [1]
    dmaq = []

    def tr_base(dst, rowmul_hh, rowbytes, dhbytes):
        return [("v_lshrrev_b32", vTmp, 5, vLane), ("v_mul_u32_u24", vTmp, rowmul_hh, vTmp),
                ("v_bfe_u32", vT2, vLane, 2, 2), ("v_add_u32", vTmp, vTmp, vT2),
                ("v_mul_u32_u24", vTmp, rowbytes, vTmp), ("v_bfe_u32", vT2, vLane, 4, 1),
                ("v_mul_u32_u24", vT2, dhbytes, vT2), ("v_add_u32", vTmp, vTmp, vT2),
                ("v_and_b32", vT2, 3, vLane), ("v_lshl_add_u32", dst, vT2, 3, vTmp)]
    def emit(ops):
        for o in ops:
            if callable(o): o()
            else: a.v(*o)

    a.v("v_and_b32", vTmp, 31, vLane)
    a.v("v_lshrrev_b32", vT2, 5, vLane)
    a.v("v_and_b32", vT3, 15, vLane)
    a.v("v_xor_b32", vT2, vT2, vT3)
    a.v("v_lshlrev_b32", vT2, 4, vT2)
    a.v("v_lshl_add_u32", B0, vTmp, 9, vT2)
    a.v("v_add_u32", B0, S(83), B0)
    def x_read(rd):
        a.wait_vm(f"x{rd}")
        for t in range(16):
            if t: a.v("v_xor_b32", V(232 + (t & 3)), 32 * t, B0)
            a.ds_read("ds_read_b128", X(16 * rd + t), V(232 + (t & 3)) if t else B0, 0)
    x_read(0)
    a.wait_lgkm0()
    x_round(1)
    stamp(a, 'xA', WS_)
    acc = [V(192 + i) for i in range(8)]
    for r in acc: a.v("v_mov_b32", r, 0)
    for t in range(32):
        if t == 16: x_read(1)
        for r in range(4):
            x = V(4 * t + r)
            a.v("v_dot2_f32_bf16", acc[r], x, sOnes, acc[r])
            a.v("v_dot2_f32_bf16", acc[4 + r], x, x, acc[4 + r])
    a.v("v_add_f32", acc[0], acc[0], acc[1]); a.v("v_add_f32", acc[2], acc[2], acc[3])
    a.v("v_add_f32", acc[4], acc[4], acc[5]); a.v("v_add_f32", acc[6], acc[6], acc[7])
    a.v("v_add_f32", acc[0], acc[0], acc[2]); a.v("v_add_f32", acc[4], acc[4], acc[6])
    a.v("v_mov_b32", acc[1], acc[0]); a.v("v_mov_b32", acc[5], acc[4])
    a.permswap(acc[0], acc[1]); a.permswap(acc[4], acc[5])
    a.v("v_add_f32", acc[0], acc[0], acc[1]); a.v("v_add_f32", acc[4], acc[4], acc[5])
    a.v("v_mul_f32", acc[0], f32(1 / 512), acc[0])
    a.v("v_mul_f32", acc[4], f32(1 / 512), acc[4])
    a.v("v_fma_f32", acc[4], Neg(acc[0]), acc[0], acc[4])
    a.v("v_max_f32", acc[4], 0, acc[4])
    a.v("v_cvt_pk_bf16_f32", acc[1], acc[0], acc[4])
    a.v("v_lshlrev_b32", vM, 16, acc[1])
    a.v("v_and_b32", acc[2], 0xffff0000, acc[1])
    a.v("v_add_f32", acc[2], f32(1e-5), acc[2])
    a.v("v_cvt_pk_bf16_f32", acc[2], acc[2], acc[2])
    a.v("v_and_b32", acc[2], 0xffff0000, acc[2])
    a.v("v_sqrt_f32", acc[2], acc[2])
    a.v("v_cvt_pk_bf16_f32", acc[2], acc[2], acc[2])
    a.v("v_and_b32", acc[2], 0xffff0000, acc[2])
    a.v("v_rcp_f32", vR, acc[2])
    a.v("v_mul_f32", vM, vM, vR)
    def norm_ops(t):
        chains = []
        for r in range(4):
            x = V(4 * t + r); ta = V(192 + 2 * r); tb = V(193 + 2 * r)
            chains.append([("v_lshlrev_b32", ta, 16, x), ("v_and_b32", tb, 0xffff0000, x),
                           ("v_fma_f32", ta, ta, vR, Neg(vM)), ("v_fma_f32", tb, tb, vR, Neg(vM)),
                           ("v_cvt_pk_bf16_f32", x, ta, tb)])
        return interleave(*chains)
    emit(norm_ops(0))
    emit(tr_base(B0, 8, 64, 32)); a.v("v_add_u32", B1, 0x10000, B0)
    emit(tr_base(B2, 8, 32, FMAT)); a.v("v_add_u32", B3, 0x10000, B2)
    stamp(a, 'stats', WS_)

    items = []
    def item(chunk, reads, D, Bop, C, pre=None, fill=None):
        items.append(dict(chunk=chunk, reads=reads, D=D, B=Bop, C=C, pre=pre or [], fill=fill or []))
    def lohi(lo, hi, off): return (lo, off) if off < 65536 else (hi, off - 65536)
    QACC = [V(128 + 16 * d, 16) for d in range(4)]
    for t in range(32):
        c, s_ = t // 8, t % 8
        nxt = norm_ops(t + 1) if t + 1 < 32 else []
        for d in range(4):
            rds = [("ds_read_b64_tr_b16", (2 * sec, 2)) + lohi(B0, B1, c * SLOT + d * 8192 + (16 * s_ + 4 * sec) * 64) for sec in range(2)]
            item(c, rds, QACC[d], X(t), 0 if t == 0 else QACC[d], fill=nxt[5 * d:5 * d + 5])
    def side_job():
        vS = V(200)
        emit(tr_base(vS, 4, 1024, 32))
        a.s("s_lshl_b32", sT, sWave, 7)
        a.s("s_add_u32", sT, sT, SIDE)
        a.v("v_add_u32", vS, sT, vS)
    def side_part(m):
        def f():
            vS = V(200)
            for e in range(2):
                b = V(204, 4) if e else V(200, 4)
        return f
    qpack = [("v_mul_f32", V(128 + r), sL2E, V(128 + r)) for r in range(64)]
    for d in range(4):
        for i in range(8):
            qpack.append(("v_cvt_pk_bf16_f32", V(128 + 8 * d + i), V(128 + 16 * d + 2 * i), V(128 + 16 * d + 2 * i + 1)))
    for t in range(8):
        qpack.append(lambda t=t: a.permswap(V(128 + 4 * t), V(128 + 4 * t + 2)))
        qpack.append(lambda t=t: a.permswap(V(128 + 4 * t + 1), V(128 + 4 * t + 3)))
    qpack.append(lambda: stamp(a, 'qproj', WS_))
    Qf = lambda t: V(128 + 4 * t, 4)
    FACC = [V(160 + 16 * u, 16) for u in range(3)]
    KA0, KA1, KA0h, KA1h = B0, B1, V(242), V(245)
    kbase = [("v_and_b32", vTmp, 31, vLane), ("v_lshrrev_b32", vT2, 5, vLane), ("v_bfe_u32", vT3, vLane, 2, 2),
             ("v_xor_b32", vT2, vT2, vT3), ("v_lshlrev_b32", vT2, 4, vT2), ("v_lshl_add_u32", KA0, vTmp, 6, vT2),
             ("v_xor_b32", KA1, 32, KA0), ("v_add_u32", KA0h, 0x10000, KA0), ("v_add_u32", KA1h, 0x10000, KA1)]
    for t in range(32):
        c, s_ = t // 8, t % 8
        for u in range(3):
            rds = [("ds_read_b64_tr_b16", (2 * sec, 2)) + lohi(B2, B3, c * SLOT + u * 4096 + (16 * s_ + 4 * sec) * 32) for sec in range(2)]
            item(4 + c, rds, FACC[u], X(t), 0 if t == 0 else FACC[u],
                 pre=qpack if (t == 0 and u == 0) else None, fill=kbase if (t == 4 and u == 0) else None)
    C1 = -2 * (2 / 3.141592653589793) ** 0.5 * LOG2E
    C2 = C1 * 0.044715
    fepi = []
    def fe0():
        a.s("s_mov_b32", sT3, f32(C2))
        a.s("s_lshl_b32", sT2, sU0, 10)
        a.s("s_add_u32", sT, sAct, sT2)
        a.s("s_add_u32", sT, sT, 256 * 1024)
        a.v("v_mov_b32", vT2, f32(C1))
    fepi.append(fe0)
    for u in range(3):
        A = FACC[u]
        chains = []
        for p in range(4):
            g0, g1, u0, u1 = A[2 * p], A[2 * p + 1], A[8 + 2 * p], A[9 + 2 * p]
            t0, t1 = V(2 * p), V(2 * p + 1)
            chains.append([("v_cvt_pk_bf16_f32", t0, g0, g1), ("v_cvt_pk_bf16_f32", t1, u0, u1),
                  ("v_lshlrev_b32", g0, 16, t0), ("v_and_b32", g1, 0xffff0000, t0),
                  ("v_lshlrev_b32", u0, 16, t1), ("v_and_b32", u1, 0xffff0000, t1),
                  ("v_mul_f32", t0, g0, g0), ("v_mul_f32", t1, g1, g1),
                  ("v_fma_f32", t0, t0, sT3, vT2), ("v_fma_f32", t1, t1, sT3, vT2),
                  ("v_mul_f32", t0, t0, g0), ("v_mul_f32", t1, t1, g1),
                  ("v_exp_f32", t0, t0), ("v_exp_f32", t1, t1),
                  ("v_add_f32", t0, 1.0, t0), ("v_add_f32", t1, 1.0, t1),
                  ("v_rcp_f32", t0, t0), ("v_rcp_f32", t1, t1),
                  ("v_mul_f32", g0, g0, t0), ("v_mul_f32", g1, g1, t1),
                  ("v_cvt_pk_bf16_f32", t0, g0, g1),
                  ("v_lshlrev_b32", g0, 16, t0), ("v_and_b32", g1, 0xffff0000, t0),
                  ("v_mul_f32", g0, g0, u0), ("v_mul_f32", g1, g1, u1),
                  ("v_cvt_pk_bf16_f32", V(8 + 4 * u + p), g0, g1)])
        fepi += interleave(*chains)
        fepi.append(lambda u=u: a.bstore("buffer_store_dwordx4", V(8 + 4 * u, 4), vL16, WS_, sT, u * 1024))
    fepi.append(lambda: stamp(a, 'ffn', WS_))
    OACC = [V(16 * d, 16) for d in range(4)]
    SP = [V(64, 16), V(80, 16)]
    E = V(96, 16); NEG = V(112, 16)
    PP = [V(160, 8), V(168, 8)]
    LL = [V(176, 2), V(178, 2)]
    VA, VAh = V(180), V(181)
    tA, tB = V(182), V(183)
    rare = []
    def slot_off(n): return ((8 + n // 2) % 4) * SLOT
    def chk(n):
        def f():
            a.v("v_add_f32", tA, LL[n % 2][0], LL[n % 2][1])
            a.v("v_cmp_lt_f32", VCC, sThr, tA)
            a.s("s_cmp_lg_u64", VCC, 0)
            a.raw(f"s_cbranch_scc1 L_rare{n}", "branch")
            a.label(f"L_back{n}")
            rare.append(n)
        return f
    def b_ops(n):
        S_ = SP[n % 2]; Ln = LL[n % 2]; Lo = LL[(n + 1) % 2]
        ops = []
        for i in range(8):
            ops.append(("v_exp_f32", E[2 * i], S_[2 * i]))
            ops.append(("v_exp_f32", E[2 * i + 1], S_[2 * i + 1]))
            if i > 0:
                ops.append(("v_add_f32", Ln[0], (Lo if i == 1 else Ln)[0], E[2 * i - 2]))
                ops.append(("v_add_f32", Ln[1], (Lo if i == 1 else Ln)[1], E[2 * i - 1]))
        ops.append(("v_add_f32", Ln[0], Ln[0], E[14]))
        ops.append(("v_add_f32", Ln[1], Ln[1], E[15]))
        ops.append(chk(n))
        for i in range(8):
            ops.append(("v_cvt_pk_bf16_f32", PP[n % 2][i], E[2 * i], E[2 * i + 1]))
        return ops
    def itemsA(n, pre=None, fills=None):
        for t in range(8):
            off = slot_off(n) + (t >> 1) * 4096 + (n % 2) * 2048
            r = lohi(KA1, KA1h, off) if t & 1 else lohi(KA0, KA0h, off)
            item(8 + n // 2, [("ds_read_b128", (0, 4)) + r], SP[n % 2], Qf(t), (0 if n == 0 else NEG) if t == 0 else SP[n % 2],
                 pre=pre if t == 0 else None, fill=fills[t] if fills else None)
    def itemsC(n, fills=None):
        for i in range(8):
            half, dt = i // 4, i % 4
            rds = [("ds_read_b64_tr_b16", (2 * sec, 2)) + lohi(VA, VAh, slot_off(n) + 16384 + dt * 4096 + (32 * (n % 2) + 16 * half + 8 * sec) * 64) for sec in range(2)]
            item(8 + n // 2, rds, OACC[dt], PP[n % 2].sub(4 * half, 4), 0 if (n == 0 and half == 0) else OACC[dt],
                 fill=fills[i] if fills else None)
    def split(ops, k, start=0):
        n = 8 - start
        out = [[] for _ in range(8)]
        for j in range(n):
            out[start + j] = ops[len(ops) * j // n: len(ops) * (j + 1) // n]
        return out
    vbase = fepi + tr_base(VA, 4, 64, 32) + [("v_add_u32", VAh, 0x10000, VA), lambda: a.s("s_mov_b32", sThr, f32(2.0 ** 30))]
    itemsA(0, pre=vbase)
    S0 = SP[0]
    t0ops = [("v_max3_f32", tA, S0[0], S0[1], S0[2])]
    for i in range(3, 15, 2): t0ops.append(("v_max3_f32", tA, S0[i], S0[i + 1], tA))
    t0ops += [("v_max_f32", tA, tA, S0[15]), ("v_mov_b32", tB, tA), lambda: a.permswap(tA, tB), ("v_max_f32", tA, tA, tB)]
    t0ops += [("v_sub_f32", NEG[r], 0, tA) for r in range(16)]
    t0ops += [("v_sub_f32", S0[r], S0[r], tA) for r in range(16)]
    t0ops += [("v_mov_b32", LL[1][0], 0), ("v_mov_b32", LL[1][1], 0)]
    pend = b_ops(0)
    for n in range(16):
        if n + 1 < 16:
            itemsA(n + 1, pre=t0ops if n == 0 else None, fills=split(pend, 8))
            prec = None
        else:
            prec = pend
        nxt = b_ops(n + 1) if n + 1 < 16 else []
        first, pend = nxt[:20], nxt[20:]
        k0 = len(items)
        itemsC(n, fills=split(first, 8, 3))
        if prec: items[k0]["pre"] = prec

    last_of_chunk = {}
    for i, it in enumerate(items): last_of_chunk[it["chunk"]] = i
    synced = set()
    def sync(ci, i):
        if FINE: stamp(a, f'c{ci}pre', WS_)
        a.wait_vm(f"c{ci}")
        a.barrier()
        if FINE: stamp(a, f'c{ci}bar', WS_)
        synced.add(ci)
        if ci == 0: dmaq.extend(side_groups())
        done = -1
        while done + 1 < 16 and last_of_chunk[done + 1] <= i: done += 1
        while issued[0] <= min(done + 4, 15):
            dmaq.extend(chunk_groups(issued[0])); issued[0] += 1
    def reads(j, i):
        it = items[j]
        if it["chunk"] not in synced:
            while dmaq: dmaq.pop(0)()
            sync(it["chunk"], i)
        for op, (so, sn), r, off in it["reads"]:
            a.ds_read(op, pool[j % NB].sub(so, sn), r, off)
    def side_exec():
        vS = V(200)
        emit(tr_base(vS, 4, 1024, 32))
        a.s("s_lshl_b32", sT, sWave, 7)
        a.s("s_add_u32", sT, sT, SIDE)
        a.v("v_add_u32", vS, sT, vS)
        a.s("s_mul_i32", sT, sWave, 2 * KS_W * 1024)
        a.s("s_lshl_b32", sT2, S(2), 10)
        a.s("s_add_u32", sT, sT, sT2)
        a.s("s_add_u32", sT, sT, WFRAG_OFF)
        a.s("s_add_u32", sT2, sT, KS_W * 1024)
        b = V(204, 4)
        for m in range(2):
            for e in range(2):
                a.ds_read("ds_read_b64_tr_b16", b.sub(0, 2), vS, m * 16384 + e * 64)
                a.ds_read("ds_read_b64_tr_b16", b.sub(2, 2), vS, m * 16384 + e * 64 + 8 * 1024)
                a.bstore("buffer_store_dwordx4", b, vL16, WS_, sT2 if e else sT)
            if m == 0:
                a.s("s_add_u32", sT, sT, 256 * 1024)
                a.s("s_add_u32", sT2, sT2, 256 * 1024)
                a.s("s_cmp_ge_u32", S(2), 86)
                a.s("s_cselect_b32", sT, 0x40000000, sT)
                a.s("s_cselect_b32", sT2, 0x40000000, sT2)
    for j in range(NB): reads(j, -1)
    for i, it in enumerate(items):
        emit(it["pre"])
        a.mfma(it["D"], pool[i % NB], it["B"], it["C"])
        if i + NB < len(items): reads(i + NB, i)
        if dmaq and i % 3 == 0: dmaq.pop(0)()
        emit(it["fill"])
        if i == 80: side_exec()
    stamp(a, 'vph', WS_)
    Lf = LL[15 % 2]
    a.v("v_add_f32", tA, Lf[0], Lf[1])
    a.v("v_mov_b32", tB, tA)
    a.permswap(tA, tB)
    a.v("v_add_f32", tA, tA, tB)
    a.v("v_rcp_f32", tA, tA)
    a.s("s_lshl_b32", sT, sHead, 13)
    a.s("s_add_u32", sT, sT, sAct)
    a.s("s_add_u32", sT2, sT, 4096)
    for d in range(4):
        for r in range(16):
            a.v("v_mul_f32", OACC[d][r], OACC[d][r], tA)
        for i in range(8):
            a.v("v_cvt_pk_bf16_f32", V(64 + 8 * d + i), OACC[d][2 * i], OACC[d][2 * i + 1])
        for hf in range(2):
            t = 2 * d + hf
            a.bstore("buffer_store_dwordx4", V(64 + 8 * d + 4 * hf, 4), vL16, WS_, sT if t < 4 else sT2, (t % 4) * 1024)
    if STAMP: a.raw("s_waitcnt vmcnt(0)")
    stamp(a, 'end', WS_); stamp(a, 'RTend', WS_, True)
    a.label("L_attn_end")
    a.raw("s_endpgm", "end")
    txt = a.text()
    for n in rare:
        S_ = SP[n % 2]; Sn = SP[(n + 1) % 2]; Ln = LL[n % 2]; Lo = LL[(n + 1) % 2]
        L = [f"L_rare{n}:", "s_nop 15", "s_nop 15"]
        L.append(f"v_max3_f32 {tA}, {S_[0]}, {S_[1]}, {S_[2]}")
        for i in range(3, 15, 2): L.append(f"v_max3_f32 {tA}, {S_[i]}, {S_[i+1]}, {tA}")
        L.append(f"v_max_f32 {tA}, {tA}, {S_[15]}")
        L.append(f"v_mov_b32 {tB}, {tA}")
        L.append("s_nop 3")
        L.append(f"v_permlane32_swap_b32 {tA}, {tB}")
        L.append("s_nop 3")
        L.append(f"v_max3_f32 {tA}, {tA}, {tB}, 0")
        L.append(f"v_sub_f32 {tB}, 0, {tA}")
        L.append(f"v_exp_f32 {tB}, {tB}")
        L.append("s_nop 3")
        for r in range(64): L.append(f"v_mul_f32 v{r}, v{r}, {tB}")
        L.append(f"v_mul_f32 {Lo[0]}, {Lo[0]}, {tB}")
        L.append(f"v_mul_f32 {Lo[1]}, {Lo[1]}, {tB}")
        for r in range(16):
            L.append(f"v_sub_f32 {S_[r]}, {S_[r]}, {tA}")
            L.append(f"v_sub_f32 {NEG[r]}, {NEG[r]}, {tA}")
            if n + 1 < 16: L.append(f"v_sub_f32 {Sn[r]}, {Sn[r]}, {tA}")
        for r in range(16): L.append(f"v_exp_f32 {E[r]}, {S_[r]}")
        L.append("s_nop 3")
        L.append(f"v_add_f32 {Ln[0]}, {Lo[0]}, {E[0]}")
        L.append(f"v_add_f32 {Ln[1]}, {Lo[1]}, {E[1]}")
        for i in range(1, 8):
            L.append(f"v_add_f32 {Ln[0]}, {Ln[0]}, {E[2*i]}")
            L.append(f"v_add_f32 {Ln[1]}, {Ln[1]}, {E[2*i+1]}")
        L.append("s_nop 7")
        L.append(f"s_branch L_back{n}")
        txt += "\n".join(("" if l.endswith(":") else "    ") + l for l in L) + "\n"
    return txt
```

```python
import sys
from asmlib import *
from common import *
PART_OFF = 48 << 20

def gen_gemm():
    a = Asm()
    sWave, sQb, sNb, sSp, sT, sT2, sBase, sM, sLast, sTile = [S(i) for i in range(4, 14)]
    sD = S(14)
    WS_ = S(40, 4)
    vLane, vL16, vTmp, vA, vAh, vW, vWh, vAx, vWx = [V(240 + i) for i in range(9)]
    a.s("s_cmp_ge_u32", S(2), 256)
    a.raw("s_cbranch_scc1 L_gemm_end", "branch")
    a.smem("s_load_dwordx2", S(20, 2), S(0, 2), 88)
    a.v("v_and_b32", vLane, 63, V(0))
    a.v("v_lshrrev_b32", vTmp, 6, V(0))
    a.v("v_readfirstlane_b32", sWave, vTmp)
    a.v("v_lshlrev_b32", vL16, 4, vLane)
    a.s("s_and_b32", sT, S(2), 7)
    a.s("s_lshr_b32", sT2, S(2), 3)
    a.s("s_and_b32", sSp, sT, 3)
    a.s("s_lshr_b32", sQb, sT, 2); a.s("s_lshl_b32", sQb, sQb, 3)
    a.s("s_and_b32", sT, sT2, 7); a.s("s_add_u32", sQb, sQb, sT)
    a.s("s_lshr_b32", sNb, sT2, 3)
    a.s("s_lshl_b32", sTile, sQb, 2); a.s("s_add_u32", sTile, sTile, sNb)
    a.s("s_mul_i32", sT, sSp, 85)
    a.s("s_cmp_ge_u32", sSp, 1); a.s("s_cselect_b32", sT2, 1, 0); a.s("s_add_u32", sT, sT, sT2)
    a.s("s_and_b32", sT2, sWave, 3)
    a.s("s_lshl_b32", sBase, sQb, 2); a.s("s_add_u32", sBase, sBase, sT2); a.s("s_mul_i32", sBase, sBase, KS_ACT)
    a.s("s_lshl_b32", sM, sNb, 2); a.s("s_add_u32", sM, sM, sT2); a.s("s_mul_i32", sM, sM, KS_W)
    a.s("s_add_u32", sM, sM, WFRAG_OFF >> 10)
    a.s("s_cmp_ge_u32", sWave, 4); a.s("s_cselect_b32", sBase, sM, sBase)
    a.s("s_add_u32", sBase, sBase, sT); a.s("s_lshl_b32", sBase, sBase, 10)
    a.s("s_sub_u32", sT, sSp, 1); a.s("s_cmp_lt_u32", sT, 2); a.s("s_cselect_b32", sLast, 0x40000000, 0)
    a.s("s_lshl_b32", sM, sWave, 10)
    a.s("s_lshr_b32", sT, sWave, 2); a.s("s_lshl_b32", sT, sT, 13)
    a.s("s_and_b32", sT2, sWave, 1); a.s("s_lshl_b32", sT2, sT2, 11); a.s("s_add_u32", sT2, sT2, sT)
    a.v("v_add_u32", vA, sT2, vL16)
    a.s("s_bfe_u32", sT2, sWave, 0x10001); a.s("s_lshl_b32", sT2, sT2, 11); a.s("s_add_u32", sT2, sT2, sT); a.s("s_add_u32", sT2, sT2, 4096)
    a.v("v_add_u32", vW, sT2, vL16)
    a.v("v_add_u32", vAh, 0x10000, vA); a.v("v_add_u32", vWh, 0x10000, vW)
    a.v("v_add_u32", vAx, 0x20000, vA); a.v("v_add_u32", vWx, 0x20000, vW)
    a.raw("s_waitcnt lgkmcnt(0)")
    srd(a, WS_, S(20), S(21), 268435456)
    NS = 5
    NCH = 22
    def chunk_groups(c):
        G = []
        for j in range(4 if c < 21 else 2):
            def g(j=j):
                a.s("s_add_u32", sD, sBase, c * 4096)
                if c == 21 and j == 1: a.s("s_add_u32", sD, sD, sLast)
                a.s("s_add_u32", M0, sM, (c % NS) * SLOT + j * 8192 - j * 1024)
                a.dma(vL16, WS_, sD, j * 1024, tag=f"c{c}")
            G.append(g)
        return G
    for c in range(NS - 1):
        for g in chunk_groups(c): g()
    issued = [NS - 1]
    dmaq = []
    ACC = [[V(16 * (2 * nt + qt), 16) for qt in range(2)] for nt in range(2)]
    groups = [(c, i) for c in range(NCH) for i in range(2 if c < 21 else 1)]
    NG = 3
    bufs = lambda g: [V(64 + 16 * (g % NG) + 4 * k, 4) for k in range(4)]
    synced = set()
    def reads(g, cur):
        c, i = groups[g]
        if c not in synced:
            while dmaq: dmaq.pop(0)()
            a.wait_vm(f"c{c}")
            a.barrier()
            synced.add(c)
            done = -1
            while done + 1 < NCH and max(k for k, gg in enumerate(groups) if gg[0] == done + 1) <= cur: done += 1
            while issued[0] <= min(done + NS, NCH - 1):
                dmaq.extend(chunk_groups(issued[0])); issued[0] += 1
            if "--gburst" in sys.argv:
                while dmaq: dmaq.pop(0)()
        b = bufs(g)
        off = (c % NS) * SLOT + i * 16384
        for k in range(2):
            o = off + k * 1024
            a.ds_read("ds_read_b128", b[k], (vA, vAh, vAx)[o >> 16], o % 65536)
        for k in range(2):
            o = off + k * 1024
            a.ds_read("ds_read_b128", b[2 + k], (vW, vWh, vWx)[o >> 16], o % 65536)
    for g in range(NG - 1): reads(g, -1)
    for g in range(len(groups)):
        b = bufs(g)
        if g + NG - 1 < len(groups): reads(g + NG - 1, g - 1)
        for nt in range(2):
            for qt in range(2):
                if "--gnomfma" not in sys.argv or g == 0: a.mfma(ACC[nt][qt], b[2 + nt], b[qt], 0 if g == 0 else ACC[nt][qt])
                if dmaq and qt == 0: dmaq.pop(0)()
    a.barrier()
    a.s("s_and_b32", sT, sWave, 3); a.s("s_lshl_b32", sT, sT, 14)
    a.v("v_add_u32", vTmp, sT, vL16)
    a.s("s_cmp_ge_u32", sWave, 4)
    a.raw("s_cbranch_scc1 L_g_k1", "branch")
    for k in range(8): a.ds_write("ds_write_b128", vTmp, V(32 + 4 * k, 4), 8192 + k * 1024)
    a.wait_lgkm0(); a.barrier()
    for k in range(8): a.ds_read("ds_read_b128", V(64 + 4 * k, 4), vTmp, k * 1024)
    for r in range(32): a.v("v_add_f32", V(96 + r), V(r), V(64 + r))
    a.wait_lgkm0()
    a.raw("s_branch L_g_st", "branch")
    a.label("L_g_k1")
    a.nop(15)
    for k in range(8): a.ds_write("ds_write_b128", vTmp, V(4 * k, 4), k * 1024)
    a.wait_lgkm0(); a.barrier()
    for k in range(8): a.ds_read("ds_read_b128", V(64 + 4 * k, 4), vTmp, 8192 + k * 1024)
    for r in range(32): a.v("v_add_f32", V(96 + r), V(32 + r), V(64 + r))
    a.wait_lgkm0()
    a.label("L_g_st")
    a.s("s_lshl_b32", sT, sTile, 2); a.s("s_add_u32", sT, sT, sSp); a.s("s_lshl_b32", sT, sT, 2)
    a.s("s_and_b32", sT2, sWave, 3); a.s("s_add_u32", sT, sT, sT2); a.s("s_lshl_b32", sT, sT, 14)
    a.s("s_lshr_b32", sT2, sWave, 2); a.s("s_lshl_b32", sT2, sT2, 13); a.s("s_add_u32", sT, sT, sT2)
    a.s("s_add_u32", sT, sT, PART_OFF)
    a.s("s_add_u32", sT2, sT, 4096)
    for k in range(8):
        a.bstore("buffer_store_dwordx4", V(96 + 4 * k, 4), vL16, WS_, sT if k < 4 else sT2, (k % 4) * 1024)
    a.label("L_gemm_end")
    a.raw("s_endpgm", "end")
    return a.text()

def gen_red():
    a = Asm()
    sT, sT2, sQ, sN = S(4), S(5), S(6), S(7)
    WS_, X_, O_ = S(40, 4), S(44, 4), S(48, 4)
    a.s("s_cmp_ge_u32", S(2), 256)
    a.raw("s_cbranch_scc1 L_red_end", "branch")
    a.smem("s_load_dwordx2", S(16, 2), S(0, 2), 0)
    a.smem("s_load_dwordx2", S(18, 2), S(0, 2), 72)
    a.smem("s_load_dwordx2", S(20, 2), S(0, 2), 88)
    a.s("s_lshr_b32", sQ, S(2), 3)
    a.s("s_and_b32", sN, S(2), 7)
    q, ng, t1, t2, vxo, vp = V(100), V(101), V(102), V(103), V(104), V(105)
    a.v("v_lshrrev_b32", q, 3, V(0))
    a.v("v_and_b32", ng, 7, V(0))
    a.s("s_lshl_b32", sT, sQ, 16); a.s("s_lshl_b32", sT2, sN, 7); a.s("s_add_u32", sT, sT, sT2)
    a.v("v_lshlrev_b32", vxo, 10, q)
    a.v("v_lshl_add_u32", vxo, ng, 4, vxo)
    a.v("v_add_u32", vxo, sT, vxo)
    a.s("s_lshr_b32", sT, sQ, 1); a.s("s_lshl_b32", sT, sT, 2); a.s("s_lshr_b32", sT2, sN, 1); a.s("s_add_u32", sT, sT, sT2)
    a.s("s_lshl_b32", sT, sT, 4)
    a.s("s_and_b32", sT2, sN, 1); a.s("s_lshl_b32", sT2, sT2, 1); a.s("s_add_u32", sT, sT, sT2)
    a.s("s_and_b32", sT2, sQ, 1); a.s("s_add_u32", sT, sT, sT2)
    a.s("s_lshl_b32", sT, sT, 14); a.s("s_add_u32", sT, sT, PART_OFF)
    a.v("v_lshrrev_b32", t1, 2, ng); a.v("v_lshlrev_b32", t1, 1, t1)
    a.v("v_lshrrev_b32", t2, 5, q); a.v("v_add_u32", t1, t1, t2)
    a.v("v_lshlrev_b32", t1, 2, t1)
    a.v("v_and_b32", t2, 3, ng); a.v("v_add_u32", t1, t1, t2)
    a.v("v_lshlrev_b32", t1, 10, t1)
    a.v("v_and_b32", t2, 31, q)
    a.v("v_lshl_add_u32", vp, t2, 4, t1)
    a.raw("s_waitcnt lgkmcnt(0)")
    srd(a, X_, S(16), S(17), 2097152)
    srd(a, O_, S(18), S(19), 2097152)
    srd(a, WS_, S(20), S(21), 268435456)
    for sp in range(4):
        for hh in range(2):
            a.bload("buffer_load_dwordx4", V(8 * sp + 4 * hh, 4), vp, WS_, sT, hh * 512)
        if sp < 3: a.s("s_add_u32", sT, sT, 65536)
    a.bload("buffer_load_dwordx4", V(40, 4), vxo, X_, 0, 0)
    for e in range(8): a.v("v_add_f32", V(e), V(e), V(8 + e))
    for e in range(8): a.v("v_add_f32", V(e), V(e), V(16 + e))
    a.s("s_mov_b32", sT2, f32(-LOG2E))
    chains = []
    for p in range(4):
        s0, s1, d0, d1 = V(2 * p), V(2 * p + 1), V(24 + 2 * p), V(25 + 2 * p)
        t0, t1_, x0, x1 = V(64 + 4 * p), V(65 + 4 * p), V(66 + 4 * p), V(67 + 4 * p)
        xin = V(40 + p)
        chains.append([("v_cvt_pk_bf16_f32", t0, s0, s1), ("v_cvt_pk_bf16_f32", t1_, d0, d1),
                       ("v_lshlrev_b32", s0, 16, t0), ("v_and_b32", s1, 0xffff0000, t0),
                       ("v_lshlrev_b32", d0, 16, t1_), ("v_and_b32", d1, 0xffff0000, t1_),
                       ("v_mul_f32", t0, sT2, d0), ("v_mul_f32", t1_, sT2, d1),
                       ("v_exp_f32", t0, t0), ("v_exp_f32", t1_, t1_),
                       ("v_add_f32", t0, 1.0, t0), ("v_add_f32", t1_, 1.0, t1_),
                       ("v_rcp_f32", t0, t0), ("v_rcp_f32", t1_, t1_),
                       ("v_mul_f32", d0, d0, t0), ("v_mul_f32", d1, d1, t1_),
                       ("v_cvt_pk_bf16_f32", t0, d0, d1),
                       ("v_lshlrev_b32", d0, 16, t0), ("v_and_b32", d1, 0xffff0000, t0),
                       ("v_mul_f32", s0, s0, d0), ("v_mul_f32", s1, s1, d1),
                       ("v_cvt_pk_bf16_f32", t0, s0, s1),
                       ("v_lshlrev_b32", s0, 16, t0), ("v_and_b32", s1, 0xffff0000, t0),
                       ("v_lshlrev_b32", x0, 16, xin), ("v_and_b32", x1, 0xffff0000, xin),
                       ("v_add_f32", s0, s0, x0), ("v_add_f32", s1, s1, x1),
                       ("v_cvt_pk_bf16_f32", V(96 + p), s0, s1)])
    for o in interleave(*chains): a.v(*o)
    a.bstore("buffer_store_dwordx4", V(96, 4), vxo, O_, 0, 0)
    a.label("L_red_end")
    a.raw("s_endpgm", "end")
    return a.text()
```

```python
import sys
from asmlib import *
from common import *
XN_OFF = 40 << 20

def gen_ln():
    a = Asm()
    sWave, sT, sT2, sT3, sOnes = [S(i) for i in range(4, 9)]
    X_, WO_, WD_, WS_ = [S(40 + 4 * i, 4) for i in range(4)]
    vLane, vL16, vTmp, vT2, vXo, vS = [V(64 + i) for i in range(6)]
    a.s("s_cmp_ge_u32", S(2), 256)
    a.raw("s_cbranch_scc1 L_ln_end", "branch")
    a.smem("s_load_dwordx2", S(16, 2), S(0, 2), 0)
    a.smem("s_load_dwordx2", S(18, 2), S(0, 2), 32)
    a.smem("s_load_dwordx2", S(20, 2), S(0, 2), 64)
    a.smem("s_load_dwordx2", S(22, 2), S(0, 2), 88)
    a.v("v_and_b32", vLane, 63, V(0))
    a.v("v_lshrrev_b32", vTmp, 6, V(0))
    a.v("v_readfirstlane_b32", sWave, vTmp)
    a.v("v_lshlrev_b32", vL16, 4, vLane)
    a.s("s_mov_b32", sOnes, 0x3f803f80)
    a.s("s_lshl_b32", sT, S(2), 15); a.s("s_lshl_b32", sT2, sWave, 7); a.s("s_add_u32", sT, sT, sT2)
    a.v("v_and_b32", vTmp, 31, vLane)
    a.v("v_lshlrev_b32", vTmp, 10, vTmp)
    a.v("v_lshrrev_b32", vT2, 5, vLane)
    a.v("v_lshl_add_u32", vTmp, vT2, 4, vTmp)
    a.v("v_add_u32", vXo, sT, vTmp)
    a.raw("s_waitcnt lgkmcnt(0)")
    srd(a, X_, S(16), S(17), 2097152)
    srd(a, WO_, S(18), S(19), 4194304)
    srd(a, WD_, S(20), S(21), 1409024)
    srd(a, WS_, S(22), S(23), 268435456)
    for t in range(4): a.bload("buffer_load_dwordx4", V(4 * t, 4), vXo, X_, 0, t * 32)
    SD = 4096
    for m, rs in ((0, WO_), (1, WD_)):
        a.s("s_lshl_b32", sT, sWave, 11)
        a.s("s_add_u32", M0, sT, SD + m * 16384)
        a.s("s_lshl_b32", sT3, S(2), 14)
        a.s("s_add_u32", sT, sT, sT3)
        for e in range(2): a.dma(vL16, rs, sT, e * 1024, tag="side")
    acc = [V(16 + i) for i in range(8)]
    for r in acc: a.v("v_mov_b32", r, 0)
    for t in range(4):
        for r in range(4):
            x = V(4 * t + r)
            a.v("v_dot2_f32_bf16", acc[r], x, sOnes, acc[r])
            a.v("v_dot2_f32_bf16", acc[4 + r], x, x, acc[4 + r])
    a.v("v_add_f32", acc[0], acc[0], acc[1]); a.v("v_add_f32", acc[2], acc[2], acc[3])
    a.v("v_add_f32", acc[4], acc[4], acc[5]); a.v("v_add_f32", acc[6], acc[6], acc[7])
    a.v("v_add_f32", V(24), acc[0], acc[2]); a.v("v_add_f32", V(25), acc[4], acc[6])
    a.s("s_lshl_b32", sT, sWave, 9)
    a.v("v_lshlrev_b32", vTmp, 3, vLane)
    a.v("v_add_u32", vT2, sT, vTmp)
    a.ds_write("ds_write_b64", vT2, V(24, 2))
    a.wait_vm("side")
    a.wait_lgkm0()
    a.barrier()
    a.v("v_and_b32", vTmp, 31, vLane)
    a.v("v_lshlrev_b32", vTmp, 3, vTmp)
    for w in range(8):
        for hh in range(2):
            a.ds_read("ds_read_b64", V(32 + 4 * w + 2 * hh, 2), vTmp, w * 512 + hh * 256)
    tb = [("v_lshrrev_b32", V(26), 5, vLane), ("v_mul_u32_u24", V(26), 4, V(26)),
          ("v_bfe_u32", V(27), vLane, 2, 2), ("v_add_u32", V(26), V(26), V(27)),
          ("v_mul_u32_u24", V(26), 1024, V(26)), ("v_bfe_u32", V(27), vLane, 4, 1),
          ("v_mul_u32_u24", V(27), 32, V(27)), ("v_add_u32", V(26), V(26), V(27)),
          ("v_and_b32", V(27), 3, vLane), ("v_lshl_add_u32", vS, V(27), 3, V(26))]
    for o in tb: a.v(*o)
    a.s("s_lshl_b32", sT, sWave, 7); a.s("s_add_u32", sT, sT, SD)
    a.v("v_add_u32", vS, sT, vS)
    for i in range(1, 16):
        a.v("v_add_f32", V(32), V(32), V(32 + 2 * i)); a.v("v_add_f32", V(33), V(33), V(33 + 2 * i))
    for m in range(2):
        for e in range(2):
            b = V(48 + 8 * m + 4 * e, 4)
            a.ds_read("ds_read_b64_tr_b16", b.sub(0, 2), vS, m * 16384 + e * 64)
            a.ds_read("ds_read_b64_tr_b16", b.sub(2, 2), vS, m * 16384 + e * 64 + 8 * 1024)
    mean, ex2, vM, vR = V(32), V(33), V(34), V(35)
    a.v("v_mul_f32", mean, f32(1 / 512), mean)
    a.v("v_mul_f32", ex2, f32(1 / 512), ex2)
    a.v("v_fma_f32", ex2, Neg(mean), mean, ex2)
    a.v("v_max_f32", ex2, 0, ex2)
    a.v("v_cvt_pk_bf16_f32", V(36), mean, ex2)
    a.v("v_lshlrev_b32", vM, 16, V(36))
    a.v("v_and_b32", V(37), 0xffff0000, V(36))
    a.v("v_add_f32", V(37), f32(1e-5), V(37))
    a.v("v_cvt_pk_bf16_f32", V(37), V(37), V(37))
    a.v("v_and_b32", V(37), 0xffff0000, V(37))
    a.v("v_sqrt_f32", V(37), V(37))
    a.v("v_cvt_pk_bf16_f32", V(37), V(37), V(37))
    a.v("v_and_b32", V(37), 0xffff0000, V(37))
    a.v("v_rcp_f32", vR, V(37))
    a.s("s_mul_i32", sT, sWave, 2 * KS_W * 1024)
    a.s("s_lshl_b32", sT2, S(2), 10)
    a.s("s_add_u32", sT, sT, sT2)
    a.s("s_add_u32", sT, sT, WFRAG_OFF)
    a.s("s_add_u32", sT2, sT, KS_W * 1024)
    a.bstore("buffer_store_dwordx4", V(48, 4), vL16, WS_, sT)
    a.bstore("buffer_store_dwordx4", V(52, 4), vL16, WS_, sT2)
    a.s("s_add_u32", sT, sT, 256 * 1024)
    a.s("s_add_u32", sT2, sT2, 256 * 1024)
    a.s("s_cmp_ge_u32", S(2), 86)
    a.s("s_cselect_b32", sT, 0x40000000, sT)
    a.s("s_cselect_b32", sT2, 0x40000000, sT2)
    a.bstore("buffer_store_dwordx4", V(56, 4), vL16, WS_, sT)
    a.bstore("buffer_store_dwordx4", V(60, 4), vL16, WS_, sT2)
    for t in range(4):
        chains = []
        for r in range(4):
            x = V(4 * t + r); ta = V(16 + 3 * r); tb_ = V(17 + 3 * r); tp = V(18 + 3 * r)
            chains.append([("v_lshlrev_b32", ta, 16, x), ("v_and_b32", tb_, 0xffff0000, x),
                ("v_sub_f32", ta, ta, vM), ("v_sub_f32", tb_, tb_, vM),
                ("v_cvt_pk_bf16_f32", tp, ta, tb_),
                ("v_lshlrev_b32", ta, 16, tp), ("v_and_b32", tb_, 0xffff0000, tp),
                ("v_mul_f32", ta, ta, vR), ("v_mul_f32", tb_, tb_, vR),
                ("v_cvt_pk_bf16_f32", x, ta, tb_)])
        for o in interleave(*chains): a.v(*o)
    a.s("s_lshl_b32", sT, S(2), 15); a.s("s_lshl_b32", sT2, sWave, 12); a.s("s_add_u32", sT, sT, sT2)
    a.s("s_add_u32", sT, sT, XN_OFF)
    a.s("s_cmp_ge_u32", S(2), 64)
    a.s("s_cselect_b32", sT, 0x40000000, sT)
    for t in range(4): a.bstore("buffer_store_dwordx4", V(4 * t, 4), vL16, WS_, sT, t * 1024)
    a.label("L_ln_end")
    a.raw("s_endpgm", "end")
    return a.text()
```

```python
import sys
from asmlib import *
from common import *
from gen3_attn import gen_attn
from gen3_fin import gen_gemm, gen_red
from gen3_ln import gen_ln
def gen_final():
    a = Asm()
    sWave, sQb, sNb, sT, sT2, sA0, sA1, sW0, sW1, sLast = [S(i) for i in range(4, 14)]
    WS_, X_, O_ = S(40, 4), S(44, 4), S(48, 4)
    vLane, vL16, vTmp, vT2 = V(240), V(241), V(242), V(243)
    a.s("s_cmp_ge_u32", S(2), 256)
    a.raw("s_cbranch_scc1 L_fin_end", "branch")
    a.smem("s_load_dwordx2", S(16, 2), S(0, 2), 0)
    a.smem("s_load_dwordx2", S(18, 2), S(0, 2), 72)
    a.smem("s_load_dwordx2", S(20, 2), S(0, 2), 88)
    a.v("v_and_b32", vLane, 63, V(0))
    a.v("v_lshrrev_b32", vTmp, 6, V(0))
    a.v("v_readfirstlane_b32", sWave, vTmp)
    a.v("v_mov_b32", V(244), V(0))
    a.v("v_lshlrev_b32", vL16, 4, vLane)
    a.s("s_and_b32", sT, S(2), 7)
    a.s("s_lshr_b32", sT2, S(2), 3)
    a.s("s_and_b32", sQb, sT, 3); a.s("s_lshl_b32", sQb, sQb, 3)
    a.s("s_and_b32", sNb, sT2, 7); a.s("s_add_u32", sQb, sQb, sNb)
    a.s("s_lshr_b32", sNb, sT, 2); a.s("s_lshl_b32", sNb, sNb, 2)
    a.s("s_lshr_b32", sT2, sT2, 3); a.s("s_add_u32", sNb, sNb, sT2)
    if "--k4same" in sys.argv:
        a.s("s_mov_b32", sQb, 0); a.s("s_mov_b32", sNb, 0)
    a.s("s_mul_i32", sT, sWave, 43)
    if "--k4dup" in sys.argv:
        a.s("s_and_b32", sT, sWave, 3); a.s("s_mul_i32", sT, sT, 43); a.s("s_add_u32", sT, sT, 2)
    if "--k4dup2" in sys.argv:
        a.s("s_lshr_b32", sT, sWave, 1); a.s("s_mul_i32", sT, sT, 43); a.s("s_add_u32", sT, sT, 2)
    a.s("s_cmp_ge_u32", sWave, 5); a.s("s_cselect_b32", sT2, 1, 0); a.s("s_sub_u32", sT, sT, sT2)
    a.s("s_cmp_ge_u32", sWave, 6); a.s("s_cselect_b32", sT2, 1, 0); a.s("s_sub_u32", sT, sT, sT2)
    a.s("s_lshl_b32", sT, sT, 10)
    a.s("s_mul_i32", sA0, sQb, 2 * KS_ACT * 1024); a.s("s_add_u32", sA0, sA0, sT)
    a.s("s_add_u32", sA1, sA0, KS_ACT * 1024)
    a.s("s_mul_i32", sW0, sNb, 2 * KS_W * 1024); a.s("s_add_u32", sW0, sW0, sT); a.s("s_add_u32", sW0, sW0, WFRAG_OFF)
    a.s("s_add_u32", sW1, sW0, KS_W * 1024)
    a.s("s_sub_u32", sT, sWave, 4); a.s("s_cmp_lt_u32", sT, 2); a.s("s_cselect_b32", sLast, 0x40000000, 0)
    a.raw("s_waitcnt lgkmcnt(0)")
    srd(a, X_, S(16), S(17), 2097152)
    srd(a, O_, S(18), S(19), 2097152)
    srd(a, WS_, S(20), S(21), 268435456)
    D = 8
    ACC = [[V(16 * (2 * nt + qt), 16) for qt in range(2)] for nt in range(2)]
    st = lambda k: [V(64 + 16 * (k % D) + 4 * i, 4) for i in range(4)]
    def load(k):
        if k and k % 4 == 0:
            for r in (sA0, sA1, sW0, sW1): a.s("s_add_u32", r, r, 4096)
        if k == 42:
            a.s("s_add_u32", sW0, sW0, sLast); a.s("s_add_u32", sW1, sW1, sLast)
        b = st(k)
        for i, r in enumerate((sA0, sA1, sW0, sW1)):
            a.bload("buffer_load_dwordx4", b[i], vL16, WS_, r, (k % 4) * 1024)
    for k in range(D): load(k)
    for k in range(43):
        b = st(k)
        for nt in range(2):
            for qt in range(2):
                a.mfma(ACC[nt][qt], b[2 + nt], b[qt], 0 if k == 0 else ACC[nt][qt])
        if k + D < 43: load(k + D)
    a.s("s_mul_i32", sT, sWave, 16 * 1040)
    a.v("v_add_u32", vTmp, sT, vL16)
    for nt in range(2):
        for qt in range(2):
            for q4 in range(4):
                blk = (nt * 2 + qt) * 4 + q4
                a.ds_write("ds_write_b128", vTmp, ACC[nt][qt].sub(4 * q4, 4), blk * 1040)
    tid = V(244)
    a.v("v_lshrrev_b32", vTmp, 3, tid)
    a.v("v_and_b32", vT2, 7, tid)
    a.s("s_lshl_b32", sT, sQb, 16); a.s("s_lshl_b32", sT2, sNb, 7); a.s("s_add_u32", sT, sT, sT2)
    a.v("v_lshlrev_b32", V(245), 10, vTmp)
    a.v("v_lshl_add_u32", V(245), vT2, 4, V(245))
    a.v("v_add_u32", V(245), sT, V(245))
    a.bload("buffer_load_dwordx4", V(232, 4), V(245), X_, 0, 0)
    a.v("v_lshrrev_b32", V(246), 2, vT2)
    a.v("v_lshlrev_b32", V(246), 1, V(246))
    a.v("v_lshrrev_b32", V(247), 5, vTmp)
    a.v("v_add_u32", V(246), V(246), V(247))
    a.v("v_lshlrev_b32", V(246), 2, V(246))
    a.v("v_and_b32", V(247), 3, vT2)
    a.v("v_add_u32", V(246), V(246), V(247))
    a.v("v_mul_u32_u24", V(246), 1040, V(246))
    a.v("v_and_b32", V(247), 31, vTmp)
    a.v("v_lshl_add_u32", V(246), V(247), 4, V(246))
    a.v("v_add_u32", V(247), 0x10000, V(246))
    a.wait_lgkm0()
    a.barrier()
    for w in range(8):
        for hh in range(2):
            off = w * 16 * 1040 + hh * 512
            if off < 65536: a.ds_read("ds_read_b128", V(8 * w + 4 * hh, 4), V(246), off)
            else: a.ds_read("ds_read_b128", V(8 * w + 4 * hh, 4), V(247), off - 65536)
    for e in range(8):
        a.v("v_add_f32", V(e), V(e), V(8 + e)); a.v("v_add_f32", V(16 + e), V(16 + e), V(24 + e))
        a.v("v_add_f32", V(32 + e), V(32 + e), V(40 + e)); a.v("v_add_f32", V(48 + e), V(48 + e), V(56 + e))
    for e in range(8):
        a.v("v_add_f32", V(e), V(e), V(16 + e))
    for e in range(8):
        a.v("v_add_f32", V(e), V(e), V(32 + e))
    a.s("s_mov_b32", sT, f32(-LOG2E))
    chains = []
    for p in range(4):
        s0, s1, d0, d1 = V(2 * p), V(2 * p + 1), V(48 + 2 * p), V(49 + 2 * p)
        t0, t1, x0, x1 = V(64 + 4 * p), V(65 + 4 * p), V(66 + 4 * p), V(67 + 4 * p)
        xin = V(232 + p)
        chains.append([("v_cvt_pk_bf16_f32", t0, s0, s1), ("v_cvt_pk_bf16_f32", t1, d0, d1),
                       ("v_lshlrev_b32", s0, 16, t0), ("v_and_b32", s1, 0xffff0000, t0),
                       ("v_lshlrev_b32", d0, 16, t1), ("v_and_b32", d1, 0xffff0000, t1),
                       ("v_mul_f32", t0, sT, d0), ("v_mul_f32", t1, sT, d1),
                       ("v_exp_f32", t0, t0), ("v_exp_f32", t1, t1),
                       ("v_add_f32", t0, 1.0, t0), ("v_add_f32", t1, 1.0, t1),
                       ("v_rcp_f32", t0, t0), ("v_rcp_f32", t1, t1),
                       ("v_mul_f32", d0, d0, t0), ("v_mul_f32", d1, d1, t1),
                       ("v_cvt_pk_bf16_f32", t0, d0, d1),
                       ("v_lshlrev_b32", d0, 16, t0), ("v_and_b32", d1, 0xffff0000, t0),
                       ("v_mul_f32", s0, s0, d0), ("v_mul_f32", s1, s1, d1),
                       ("v_cvt_pk_bf16_f32", t0, s0, s1),
                       ("v_lshlrev_b32", s0, 16, t0), ("v_and_b32", s1, 0xffff0000, t0),
                       ("v_lshlrev_b32", x0, 16, xin), ("v_and_b32", x1, 0xffff0000, xin),
                       ("v_add_f32", s0, s0, x0), ("v_add_f32", s1, s1, x1),
                       ("v_cvt_pk_bf16_f32", V(96 + p), s0, s1)])
    for o in interleave(*chains): a.v(*o)
    a.bstore("buffer_store_dwordx4", V(96, 4), V(245), O_, 0, 0)
    a.label("L_fin_end")
    a.raw("s_endpgm", "end")
    return a.text()

HEADER = open("recurrent_scan__sliding_block_cached__geglu_ffn__prompt.s.ref").read().split("; Override launch")[0]

def kd(name, vg=256):
    return f""".section .rodata,"a"
.p2align 6
.amdhsa_kernel {name}
  .amdhsa_next_free_vgpr {vg}
  .amdhsa_next_free_sgpr 102
  .amdhsa_accum_offset {vg}
  .amdhsa_group_segment_fixed_size 0
  .amdhsa_kernarg_size 96
  .amdhsa_user_sgpr_count 2
  .amdhsa_user_sgpr_kernarg_segment_ptr 1
  .amdhsa_system_sgpr_workgroup_id_x 1
.end_amdhsa_kernel
"""

def main():
    out = HEADER
    out += "; @launch kernel=attn_kernel grid=(256,1,1) block=(512,1,1) lds=163840\n"
    if "--newfin" not in sys.argv:
        out += "; @launch kernel=final_kernel grid=(256,1,1) block=(512,1,1) lds=133120\n"
        ks = (("attn_kernel", gen_attn, 256), ("final_kernel", gen_final, 256))
    else:
        out += "; @launch kernel=gemm_kernel grid=(256,1,1) block=(512,1,1) lds=163840\n"
        out += "; @launch kernel=red_kernel grid=(256,1,1) block=(512,1,1) lds=0\n"
        ks = (("attn_kernel", gen_attn, 256), ("gemm_kernel", gen_gemm, 256), ("red_kernel", gen_red, 112))
    out += '.amdgcn_target "amdgcn-amd-amdhsa--gfx950"\n.text\n'
    for name, g, vg in ks:
        out += f".globl {name}\n.p2align 8\n.type {name},@function\n{name}:\n" + g()
    for name, g, vg in ks: out += kd(name, vg)
    dst = sys.argv[1] if len(sys.argv) > 1 and not sys.argv[1].startswith("--") else "recurrent_scan__sliding_block_cached__geglu_ffn__prompt.s"
    open(dst, "w").write(out)
    if STAMP: open("stamp_names.txt", "w").write("\n".join(stamp_names))
    print("wrote", dst, len(out), "bytes", out.count("\n"), "lines")
main()
```

```python
import struct

class V:
    def __init__(s, i, n=1): s.i, s.n = i, n
    def __str__(s): return f"v{s.i}" if s.n == 1 else f"v[{s.i}:{s.i+s.n-1}]"
    def regs(s): return set(range(s.i, s.i + s.n))
    def __getitem__(s, k): return V(s.i + k)
    def sub(s, k, n): return V(s.i + k, n)

class S:
    def __init__(s, i, n=1): s.i, s.n = i, n
    def __str__(s): return f"s{s.i}" if s.n == 1 else f"s[{s.i}:{s.i+s.n-1}]"
    def regs(s): return set(range(s.i, s.i + s.n))
    def __getitem__(s, k): return S(s.i + k)

class Neg:
    def __init__(s, r): s.r = r
    def __str__(s): return "-" + str(s.r)

class Sp:
    def __init__(s, name): s.name = name
    def __str__(s): return s.name
VCC = Sp("vcc"); EXEC = Sp("exec"); M0 = Sp("m0")

def f32(x):
    return "0x%08x" % struct.unpack("<I", struct.pack("<f", x))[0]

TRANS = ("v_exp_f32", "v_rcp_f32", "v_rsq_f32", "v_sqrt_f32", "v_log_f32")

class Ins:
    def __init__(s, text, kind):
        s.text = text; s.kind = kind
        s.vr = set(); s.vw = set(); s.sr = set(); s.sw = set()
        s.op = text.split()[0]
        s.srcc = None
        s.ab = set()
        s.d = None
        s.tag = None
        s.states = 1
        s.skip = False

class Asm:
    def __init__(s):
        s.ins = []
        s.mark = None
    def cond_begin(s): s.mark = len(s.ins)
    def cond_end(s):
        for I in s.ins[s.mark:]: I.skip = True
        s.mark = None
    def _add(s, op, dsts, srcs, kind, mods=""):
        ops = list(dsts) + list(srcs)
        text = op + " " + ", ".join(str(o) for o in ops)
        if mods: text += " " + mods
        I = Ins(text, kind)
        for d in dsts:
            if isinstance(d, V): I.vw |= d.regs()
            elif isinstance(d, S): I.sw |= d.regs()
            elif isinstance(d, Sp): I.sw.add(d.name)
        for o in srcs:
            if isinstance(o, Neg): o = o.r
            if isinstance(o, V): I.vr |= o.regs()
            elif isinstance(o, S): I.sr |= o.regs()
            elif isinstance(o, Sp): I.sr.add(o.name)
        s.ins.append(I)
        return I
    def raw(s, text, kind="salu"):
        I = Ins(text, kind); s.ins.append(I); return I
    def label(s, name):
        I = Ins(name + ":", "label"); I.states = 0; s.ins.append(I)
    def comment(s, c):
        I = Ins("; " + c, "comment"); I.states = 0; s.ins.append(I)
    def v(s, op, dst, *srcs, mods=""):
        if op.startswith("v_mfma"): raise Exception("use mfma")
        kind = "valu"
        if op in TRANS: kind = "trans"
        if op.startswith("v_dot"): kind = "dot"
        if op.startswith("v_readfirstlane") or op.startswith("v_readlane"): kind = "readlane"
        I = s._add(op, [dst], srcs, kind, mods)
        if op.startswith("v_fmac") or op.startswith("v_dot2c"): I.vr |= dst.regs()
        if op.startswith("v_cndmask") and len(srcs) == 2: I.sr.add("vcc")
        return I
    def permswap(s, a, b):
        I = s._add("v_permlane32_swap_b32", [a], [b], "permlane")
        I.vr |= a.regs(); I.vw |= b.regs()
        return I
    def mfma(s, d, a, b, c):
        I = s._add("v_mfma_f32_32x32x16_bf16", [d], [a, b, c], "mfma")
        I.ab = a.regs() | b.regs()
        I.d = (d.i, d.n)
        if isinstance(c, V): I.srcc = (c.i, c.n)
        return I
    def s(s_, op, dst, *srcs):
        if op.startswith("s_cmp"):
            return s_._add(op, [], [dst] + list(srcs), "salu")
        return s_._add(op, [dst], srcs, "salu")
    def smem(s, op, dst, base, off):
        return s._add(op, [dst], [base, off], "smem")
    def ds_read(s, op, dst, addr, off=0):
        assert 0 <= off < 65536, off
        import sys
        if "--nolds" in sys.argv and getattr(s, "nolds_on", False): return None
        return s._add(op, [dst], [addr], "ldsr", f"offset:{off}" if off else "")
    def ds_write(s, op, addr, data, off=0):
        assert 0 <= off < 65536, off
        return s._add(op, [], [addr, data], "ldsw", f"offset:{off}" if off else "")
    def bload(s, op, dst, voff, srd, soff=0, off=0, tag=None, extra=""):
        assert 0 <= off < 4096
        I = s._add(op, [dst], [voff, srd, soff], "vload", ("offen" + (f" offset:{off}" if off else "") + (" " + extra if extra else "")))
        I.tag = tag; return I
    def dma(s, voff, srd, soff=0, off=0, tag=None, extra="", cond=False):
        assert 0 <= off < 4096
        I = s._add("buffer_load_dwordx4", [], [voff, srd, soff], "dma", "offen" + (f" offset:{off}" if off else "") + " lds" + (" " + extra if extra else ""))
        I.sr.add("m0")
        I.tag = tag; I.cond = cond; return I
    def bstore(s, op, data, voff, srd, soff=0, off=0, tag=None, extra=""):
        assert 0 <= off < 4096
        I = s._add(op, [], [data, voff, srd, soff], "vstore", "offen" + (f" offset:{off}" if off else "") + (" " + extra if extra else ""))
        I.data = data.regs(); I.wide = data.n >= 3
        I.tag = tag; return I
    def wait_vm(s, tag):
        I = Ins("WAITVM", "waitvm"); I.tag = tag; I.states = 0; s.ins.append(I)
    def wait_lgkm0(s):
        I = Ins("WAITLGKM0", "waitlgkm0"); I.states = 0; s.ins.append(I)
    def barrier(s):
        s.raw("s_barrier", "barrier")
    def nop(s, n):
        I = s.raw(f"s_nop {n}", "nop"); I.states = n + 1

    def insert_waits(s):
        out = []
        lq = []
        vq = []
        def emit_wait(vm=None, lg=None):
            t = "s_waitcnt"
            if vm is not None: t += f" vmcnt({vm})"
            if lg is not None: t += f" lgkmcnt({lg})"
            out.append(Ins(t, "wait"))
        for I in s.ins:
            if I.kind == "waitvm":
                idx = max([k for k, e in enumerate(vq) if e[1] == I.tag], default=-1)
                if idx >= 0:
                    n = len(vq) - idx - 1
                    if not vq[idx][2]: n = sum(1 for e in vq[idx + 1:] if not e[2])
                    assert n <= 63
                    emit_wait(vm=n); del vq[:idx + 1]
                continue
            if I.kind == "waitlgkm0":
                if lq: emit_wait(lg=0); lq.clear()
                continue
            if I.kind in ("label", "comment"):
                out.append(I); continue
            regs = I.vr | I.vw
            vmn = lgn = None
            idx = max([k for k, e in enumerate(lq) if e & regs], default=-1)
            if idx >= 0:
                lgn = len(lq) - idx - 1; del lq[:idx + 1]
            idx = max([k for k, e in enumerate(vq) if e[0] & regs], default=-1)
            if idx >= 0:
                vmn = sum(1 for e in vq[idx + 1:] if not e[2]); del vq[:idx + 1]
                assert vmn <= 63
            if I.kind in ("ldsr", "ldsw") and len(lq) >= 15:
                k = len(lq) - 14
                lgn = min(lgn, 14) if lgn is not None else 14
                del lq[:k]
            if I.kind in ("vload", "dma", "vstore") and len(vq) >= 62:
                k = len(vq) - 61
                vmn = min(vmn, 61) if vmn is not None else 61
                del vq[:k]
            if vmn is not None or lgn is not None:
                assert not I.skip
                emit_wait(vmn, lgn)
            out.append(I)
            if I.kind == "ldsr": lq.append(set(I.vw))
            elif I.kind == "ldsw": lq.append(set())
            elif I.kind == "vload": vq.append((set(I.vw), I.tag, False))
            elif I.kind in ("dma", "vstore"): vq.append((set(), I.tag, getattr(I, "cond", False)))
        s.ins = out

    def fix_hazards(s):
        out = []
        VAL = ("valu", "trans", "dot", "permlane", "readlane")
        def need(P, C):
            n = 0
            pk, ck = P.kind, C.kind
            if pk in VAL:
                if ck == "mfma" and (P.vw & C.vr): n = max(n, 2)
                if ck == "permlane" and (P.vw & C.vr): n = max(n, 2)
                if ck == "readlane" and (P.vw & C.vr): n = max(n, 1)
                if pk == "trans" and ck in VAL and ck != "trans" and (P.vw & C.vr): n = max(n, 1)
                if pk == "dot" and ck in VAL + ("mfma", "vstore", "ldsw", "vload", "ldsr", "dma") and (P.vw & (C.vr | C.vw)):
                    n = max(n, 0 if (C.op == P.op and False) else 3)
                if P.sw:
                    if ck in VAL + ("mfma",) and (P.sw & C.sr): n = max(n, 2)
                    if ck in ("vload", "vstore", "dma") and (P.sw & C.sr): n = max(n, 5)
                    if ck in ("salu",) and (P.sw & C.sr): n = max(n, 2)
            if pk == "mfma":
                D = set(range(P.d[0], P.d[0] + P.d[1]))
                if ck == "mfma":
                    if D & C.ab: n = max(n, 12)
                    if C.srcc is not None:
                        cs = set(range(C.srcc[0], C.srcc[0] + C.srcc[1]))
                        if cs & D and C.srcc != P.d: n = max(n, 10)
                elif ck in VAL + ("vstore", "ldsw", "vload", "ldsr", "dma"):
                    if D & (C.vr | C.vw): n = max(n, 12)
                if P.srcc is not None and ck in VAL:
                    cs = set(range(P.srcc[0], P.srcc[0] + P.srcc[1]))
                    if cs & C.vw: n = max(n, 7)
            if pk == "salu" and "m0" in P.sw and ck == "dma": n = max(n, 1)
            if pk == "vstore" and getattr(P, "wide", False):
                if P.data & C.vw: n = max(n, 2)
            return n
        for I in s.ins:
            if I.kind in ("label", "comment"):
                out.append(I); continue
            req = 0
            dist = 0
            for P in reversed(out[-60:]):
                if P.kind in ("label", "comment"): continue
                nd = need(P, I)
                if nd > dist: req = max(req, nd - dist)
                if not (P.skip and not I.skip): dist += P.states
                if dist > 24: break
            while req > 0:
                k = min(req, 16)
                N = Ins(f"s_nop {k-1}", "nop"); N.states = k; N.skip = I.skip; out.append(N); req -= k
            out.append(I)
        s.ins = out

    def text(s):
        s.insert_waits(); s.fix_hazards()
        lines = []
        for I in s.ins:
            if I.kind == "label": lines.append(I.text)
            else: lines.append("    " + I.text)
        return "\n".join(lines) + "\n"
```

```python
import sys
from asmlib import *
from common import *
from gen3_ln import XN_OFF

def argval(n, d):
    for x in sys.argv:
        if x.startswith(f'--{n}='): return int(x.split('=')[1])
    return d
DMARATE = argval('dmarate', 2)
SIDEAT = argval('sideat', 110)
def gen_attn():
    a = Asm()
    sWave, sHead, sQblk, sU0, sT, sT2, sM0b, sFb, sOnes, sL2E = [S(i) for i in range(4, 14)]
    sT3 = S(15); sKVb = S(89); sThr = S(90); sD = S(91); sAct = S(84)
    X_, K_, WQ_, WO_, WD_, WS_, WG_, V_, WU_ = [S(40 + 4 * i, 4) for i in range(9)]
    vDV = V(251)
    vLane, vL16, vDW, vDF, vDK = V(240), V(241), V(242), V(243), V(244)
    vM, vR = V(245), V(246)
    B0, B1, B2, B3 = V(247), V(248), V(249), V(250)
    vTmp, vT2, vT3 = V(252), V(253), V(254)
    X = lambda t: V(4 * t, 4)
    NB = 8
    pool = [V(208 + 4 * i, 4) for i in range(NB)]

    a.s("s_cmp_ge_u32", S(2), 256)
    a.raw("s_cbranch_scc1 L_attn_end", "branch")
    a.smem("s_load_dwordx16", S(16, 16), S(0, 2), 0)
    a.smem("s_load_dwordx8", S(32, 8), S(0, 2), 64)
    a.v("v_and_b32", vLane, 63, V(0))
    a.v("v_lshrrev_b32", vTmp, 6, V(0))
    a.v("v_readfirstlane_b32", sWave, vTmp)
    a.s("s_and_b32", sT, S(2), 7)
    a.s("s_lshr_b32", sT2, S(2), 3)
    a.s("s_lshl_b32", sHead, sT, 2)
    a.s("s_and_b32", sT, sT2, 3)
    a.s("s_add_u32", sHead, sHead, sT)
    a.s("s_lshr_b32", sQblk, sT2, 2)
    a.s("s_mul_i32", sT, sHead, 3)
    a.s("s_lshl_b32", sT2, sHead, 1)
    a.s("s_add_u32", sT2, sT2, 22)
    a.s("s_min_u32", sU0, sT, sT2)
    a.s("s_mov_b32", sOnes, 0x3f803f80)
    a.s("s_mov_b32", sL2E, f32(LOG2E * SCALE))
    a.s("s_lshl_b32", sM0b, sWave, 10)
    a.v("v_lshlrev_b32", vL16, 4, vLane)
    a.v("v_lshrrev_b32", vTmp, 5, vLane)
    a.v("v_and_b32", vT2, 31, vLane)
    a.v("v_xor_b32", vT2, vT2, vTmp)
    a.v("v_lshlrev_b32", vT2, 4, vT2)
    a.v("v_lshl_add_u32", V(224), vTmp, 10, vT2)
    for i in range(1, 8): a.v("v_xor_b32", V(224 + i), 32 * i, V(224))
    a.s("s_lshl_b32", sT, sQblk, 8)
    a.s("s_lshl_b32", sT2, sWave, 5)
    a.s("s_add_u32", sT, sT, sT2)
    a.s("s_lshl_b32", S(85), sT, 10)
    a.s("s_lshl_b32", S(83), sWave, 14)
    a.s("s_add_u32", S(83), S(83), 32768)
    a.raw("s_waitcnt lgkmcnt(0)")
    srd(a, X_, S(16), S(17), 2097152)
    def x_round(rd):
        for n in range(16):
            a.s("s_add_u32", sT, S(85), n * 2048)
            a.s("s_add_u32", M0, S(83), n * 1024 - rd * 512)
            a.dma(V(224 + (n & 7)), X_, sT, rd * 512, tag=f"x{rd}")
    x_round(0)
    a.s("s_and_b32", sT3, sWave, 3)
    a.s("s_lshl_b32", sT, sT3, 5)
    a.v("v_lshrrev_b32", vTmp, 2, vLane)
    a.v("v_add_u32", vTmp, sT, vTmp)
    a.v("v_and_b32", vT2, 3, vLane)
    a.v("v_lshlrev_b32", vT3, 4, vT2)
    a.v("v_lshl_add_u32", vDW, vTmp, 13, vT3)
    a.s("s_lshl_b32", sT, sT3, 4)
    a.v("v_lshrrev_b32", vTmp, 2, vLane)
    a.v("v_add_u32", vTmp, sT, vTmp)
    a.v("v_lshl_add_u32", vDV, vTmp, 8, vT3)
    a.v("v_bfe_u32", vT3, vLane, 4, 2)
    a.v("v_xor_b32", vT3, vT3, vT2)
    a.v("v_lshlrev_b32", vT3, 4, vT3)
    a.v("v_lshl_add_u32", vDK, vTmp, 8, vT3)
    a.s("s_lshl_b32", sT2, sT3, 5)
    a.v("v_lshrrev_b32", vTmp, 1, vLane)
    a.v("v_add_u32", vTmp, sT2, vTmp)
    a.s("s_mov_b32", sT, 2752)
    a.v("v_mul_lo_u32", vTmp, vTmp, sT)
    a.v("v_and_b32", vT2, 1, vLane)
    a.v("v_lshl_add_u32", vDF, vT2, 4, vTmp)
    a.s("s_lshl_b32", sFb, sT3, 10)
    a.s("s_lshl_b32", sM0b, sT3, 11)
    a.s("s_mul_i32", sT, sHead, 524288)
    a.s("s_add_u32", sT, sT, 393216)
    a.s("s_add_u32", S(80), S(18), sT); a.s("s_addc_u32", S(81), S(19), 0)
    srd(a, K_, S(80), S(81), 131072)
    a.s("s_add_u32", S(80), S(20), sT); a.s("s_addc_u32", S(81), S(21), 0)
    srd(a, V_, S(80), S(81), 131072)
    a.s("s_lshl_b32", sT, sHead, 8)
    a.s("s_add_u32", S(80), S(22), sT); a.s("s_addc_u32", S(81), S(23), 0)
    a.s("s_sub_u32", S(82), 4194304, sT)
    srd(a, WQ_, S(80), S(81), S(82))
    srd(a, WO_, S(24), S(25), 4194304)
    srd(a, WD_, S(32), S(33), 1409024)
    srd(a, WS_, S(38), S(39), 268435456)
    srd(a, WG_, S(28), S(29), 1409024)
    srd(a, WU_, S(30), S(31), 1409024)
    a.s("s_mul_i32", sT, sQblk, 8 * KS_ACT * 1024)
    a.s("s_mul_i32", sT2, sWave, KS_ACT * 1024)
    a.s("s_add_u32", sAct, sT, sT2)
    stamp_init(a, sWave)
    stamp(a, 'start', WS_); stamp(a, 'RTstart', WS_, True)

    lab = [0]
    def condgroup(fs):
        def g():
            lab[0] += 1
            a.s("s_cmp_ge_u32", sWave, 4)
            a.raw(f"s_cbranch_scc1 L_nd{lab[0]}", "branch")
            a.cond_begin()
            for f in fs: f()
            a.cond_end()
            a.label(f"L_nd{lab[0]}")
        return g
    def chunk_groups(ci):
        ty, c = ci // 4, ci % 4
        slot = (ci % 4) * SLOT
        tag = f"c{ci}"
        G = []
        if ty == 1:
            for m, rs in ((0, WG_), (1, WU_)):
                for j in range(3):
                    def g(j=j, m=m, rs=rs):
                        a.s("s_lshl_b32", sD, sU0, 5)
                        a.s("s_add_u32", sD, sD, c * 128 * 2752)
                        a.s("s_add_u32", M0, sFb, slot + m * FMAT + j * 4096 - j * 32)
                        a.dma(vDF, rs, sD, j * 32, tag=tag, cond=True)
                    G.append(g)
        elif ty == 0:
            for rg in range(2):
                for j in range(4):
                    def g(j=j, rg=rg):
                        a.s("s_mov_b32", sD, c * 128 * 8192 + rg * 16 * 8192)
                        a.s("s_add_u32", M0, sM0b, slot + rg * 1024 + j * 8192 - j * 64)
                        a.dma(vDW, WQ_, sD, j * 64, tag=tag, cond=True)
                    G.append(g)
        else:
            for m, (vo, rs) in enumerate(((vDK, K_), (vDV, V_))):
                for j in range(4):
                    def g(j=j, m=m, vo=vo, rs=rs):
                        a.s("s_mov_b32", sD, (ci - 8) * 16384)
                        a.s("s_add_u32", M0, sFb, slot + m * 16384 + j * 4096 - j * 64)
                        a.dma(vo, rs, sD, j * 64, tag=tag, cond=True)
                    G.append(g)
        return [condgroup(G[i:i + 2]) for i in range(0, len(G), 2)]
    def side_groups():
        G = []
        for m, rs in ((0, WO_), (1, WD_)):
            for e in range(2):
                def g(m=m, rs=rs, e=e):
                    a.s("s_lshl_b32", sD, sWave, 11)
                    a.s("s_add_u32", M0, sD, SIDE + m * 16384)
                    a.s("s_lshl_b32", sT3, S(2), 14)
                    a.s("s_add_u32", sD, sD, sT3)
                    a.dma(vL16, rs, sD, e * 1024, tag="side")
                G.append(g)
        return G
    for g in chunk_groups(0): g()
    issued = [1]
    dmaq = []

    def tr_base(dst, rowmul_hh, rowbytes, dhbytes):
        return [("v_lshrrev_b32", vTmp, 5, vLane), ("v_mul_u32_u24", vTmp, rowmul_hh, vTmp),
                ("v_bfe_u32", vT2, vLane, 2, 2), ("v_add_u32", vTmp, vTmp, vT2),
                ("v_mul_u32_u24", vTmp, rowbytes, vTmp), ("v_bfe_u32", vT2, vLane, 4, 1),
                ("v_mul_u32_u24", vT2, dhbytes, vT2), ("v_add_u32", vTmp, vTmp, vT2),
                ("v_and_b32", vT2, 3, vLane), ("v_lshl_add_u32", dst, vT2, 3, vTmp)]
    def emit(ops):
        for o in ops:
            if callable(o): o()
            else: a.v(*o)

    a.v("v_and_b32", vTmp, 31, vLane)
    a.v("v_lshrrev_b32", vT2, 5, vLane)
    a.v("v_and_b32", vT3, 15, vLane)
    a.v("v_xor_b32", vT2, vT2, vT3)
    a.v("v_lshlrev_b32", vT2, 4, vT2)
    a.v("v_lshl_add_u32", B0, vTmp, 9, vT2)
    a.v("v_add_u32", B0, S(83), B0)
    def x_read(rd):
        a.wait_vm(f"x{rd}")
        for t in range(16):
            if t: a.v("v_xor_b32", V(232 + (t & 3)), 32 * t, B0)
            a.ds_read("ds_read_b128", X(16 * rd + t), V(232 + (t & 3)) if t else B0, 0)
    x_read(0)
    a.wait_lgkm0()
    x_round(1)
    stamp(a, 'xA', WS_)
    acc = [V(192 + i) for i in range(8)]
    for r in acc: a.v("v_mov_b32", r, 0)
    for t in range(32):
        if t == 16: x_read(1)
        for r in range(4):
            x = V(4 * t + r)
            a.v("v_dot2_f32_bf16", acc[r], x, sOnes, acc[r])
            a.v("v_dot2_f32_bf16", acc[4 + r], x, x, acc[4 + r])
    a.v("v_add_f32", acc[0], acc[0], acc[1]); a.v("v_add_f32", acc[2], acc[2], acc[3])
    a.v("v_add_f32", acc[4], acc[4], acc[5]); a.v("v_add_f32", acc[6], acc[6], acc[7])
    a.v("v_add_f32", acc[0], acc[0], acc[2]); a.v("v_add_f32", acc[4], acc[4], acc[6])
    a.v("v_mov_b32", acc[1], acc[0]); a.v("v_mov_b32", acc[5], acc[4])
    a.permswap(acc[0], acc[1]); a.permswap(acc[4], acc[5])
    a.v("v_add_f32", acc[0], acc[0], acc[1]); a.v("v_add_f32", acc[4], acc[4], acc[5])
    a.v("v_mul_f32", acc[0], f32(1 / 512), acc[0])
    a.v("v_mul_f32", acc[4], f32(1 / 512), acc[4])
    a.v("v_fma_f32", acc[4], Neg(acc[0]), acc[0], acc[4])
    a.v("v_max_f32", acc[4], 0, acc[4])
    a.v("v_cvt_pk_bf16_f32", acc[1], acc[0], acc[4])
    a.v("v_lshlrev_b32", vM, 16, acc[1])
    a.v("v_and_b32", acc[2], 0xffff0000, acc[1])
    a.v("v_add_f32", acc[2], f32(1e-5), acc[2])
    a.v("v_cvt_pk_bf16_f32", acc[2], acc[2], acc[2])
    a.v("v_and_b32", acc[2], 0xffff0000, acc[2])
    a.v("v_sqrt_f32", acc[2], acc[2])
    a.v("v_cvt_pk_bf16_f32", acc[2], acc[2], acc[2])
    a.v("v_and_b32", acc[2], 0xffff0000, acc[2])
    a.v("v_rcp_f32", vR, acc[2])
    a.v("v_mul_f32", vM, vM, vR)
    def norm_ops(t):
        chains = []
        for r in range(4):
            x = V(4 * t + r); ta = V(192 + 2 * r); tb = V(193 + 2 * r)
            chains.append([("v_lshlrev_b32", ta, 16, x), ("v_and_b32", tb, 0xffff0000, x),
                           ("v_fma_f32", ta, ta, vR, Neg(vM)), ("v_fma_f32", tb, tb, vR, Neg(vM)),
                           ("v_cvt_pk_bf16_f32", x, ta, tb)])
        return interleave(*chains)
    emit(norm_ops(0))
    emit(tr_base(B0, 8, 64, 32)); a.v("v_add_u32", B1, 0x10000, B0)
    emit(tr_base(B2, 8, 32, FMAT)); a.v("v_add_u32", B3, 0x10000, B2)
    stamp(a, 'stats', WS_)
    if "--prio" in sys.argv:
        a.s("s_cmp_ge_u32", sWave, 4)
        a.raw("s_cbranch_scc0 L_prio", "branch")
        a.raw("s_setprio 1")
        a.label("L_prio")

    items = []
    def item(chunk, reads, D, Bop, C, pre=None, fill=None):
        items.append(dict(chunk=chunk, reads=reads, D=D, B=Bop, C=C, pre=pre or [], fill=fill or []))
    def lohi(lo, hi, off): return (lo, off) if off < 65536 else (hi, off - 65536)
    QACC = [V(128 + 16 * d, 16) for d in range(4)]
    for t in range(32):
        c, s_ = t // 8, t % 8
        nxt = norm_ops(t + 1) if t + 1 < 32 else []
        for d in range(4):
            rds = [("ds_read_b64_tr_b16", (2 * sec, 2)) + lohi(B0, B1, c * SLOT + d * 8192 + (16 * s_ + 4 * sec) * 64) for sec in range(2)]
            item(c, rds, QACC[d], X(t), 0 if t == 0 else QACC[d], fill=nxt[5 * d:5 * d + 5])
    def side_job():
        vS = V(200)
        emit(tr_base(vS, 4, 1024, 32))
        a.s("s_lshl_b32", sT, sWave, 7)
        a.s("s_add_u32", sT, sT, SIDE)
        a.v("v_add_u32", vS, sT, vS)
    def side_part(m):
        def f():
            vS = V(200)
            for e in range(2):
                b = V(204, 4) if e else V(200, 4)
        return f
    qpack = [("v_mul_f32", V(128 + r), sL2E, V(128 + r)) for r in range(64)]
    for d in range(4):
        for i in range(8):
            qpack.append(("v_cvt_pk_bf16_f32", V(128 + 8 * d + i), V(128 + 16 * d + 2 * i), V(128 + 16 * d + 2 * i + 1)))
    for t in range(8):
        qpack.append(lambda t=t: a.permswap(V(128 + 4 * t), V(128 + 4 * t + 2)))
        qpack.append(lambda t=t: a.permswap(V(128 + 4 * t + 1), V(128 + 4 * t + 3)))
    qpack.append(lambda: stamp(a, 'qproj', WS_))
    Qf = lambda t: V(128 + 4 * t, 4)
    FACC = [V(160 + 16 * u, 16) for u in range(3)]
    KA0, KA1, KA0h, KA1h = B0, B1, V(242), V(245)
    kbase = [("v_and_b32", vTmp, 31, vLane), ("v_lshrrev_b32", vT2, 5, vLane), ("v_bfe_u32", vT3, vLane, 2, 2),
             ("v_xor_b32", vT2, vT2, vT3), ("v_lshlrev_b32", vT2, 4, vT2), ("v_lshl_add_u32", KA0, vTmp, 6, vT2),
             ("v_xor_b32", KA1, 32, KA0), ("v_add_u32", KA0h, 0x10000, KA0), ("v_add_u32", KA1h, 0x10000, KA1)]
    for t in range(32):
        c, s_ = t // 8, t % 8
        for u in range(3):
            rds = [("ds_read_b64_tr_b16", (2 * sec, 2)) + lohi(B2, B3, c * SLOT + u * 4096 + (16 * s_ + 4 * sec) * 32) for sec in range(2)]
            item(4 + c, rds, FACC[u], X(t), 0 if t == 0 else FACC[u],
                 pre=qpack if (t == 0 and u == 0) else None, fill=kbase if (t == 4 and u == 0) else None)
    C1 = -2 * (2 / 3.141592653589793) ** 0.5 * LOG2E
    C2 = C1 * 0.044715
    fepi = []
    def fe0():
        a.s("s_mov_b32", sT3, f32(C2))
        a.s("s_lshl_b32", sT2, sU0, 10)
        a.s("s_add_u32", sT, sAct, sT2)
        a.s("s_add_u32", sT, sT, 256 * 1024)
        a.v("v_mov_b32", vT2, f32(C1))
    fepi.append(fe0)
    for u in range(3):
        A = FACC[u]
        chains = []
        for p in range(4):
            g0, g1, u0, u1 = A[2 * p], A[2 * p + 1], A[8 + 2 * p], A[9 + 2 * p]
            t0, t1 = V(2 * p), V(2 * p + 1)
            chains.append([("v_cvt_pk_bf16_f32", t0, g0, g1), ("v_cvt_pk_bf16_f32", t1, u0, u1),
                  ("v_lshlrev_b32", g0, 16, t0), ("v_and_b32", g1, 0xffff0000, t0),
                  ("v_lshlrev_b32", u0, 16, t1), ("v_and_b32", u1, 0xffff0000, t1),
                  ("v_mul_f32", t0, g0, g0), ("v_mul_f32", t1, g1, g1),
                  ("v_fma_f32", t0, t0, sT3, vT2), ("v_fma_f32", t1, t1, sT3, vT2),
                  ("v_mul_f32", t0, t0, g0), ("v_mul_f32", t1, t1, g1),
                  ("v_exp_f32", t0, t0), ("v_exp_f32", t1, t1),
                  ("v_add_f32", t0, 1.0, t0), ("v_add_f32", t1, 1.0, t1),
                  ("v_rcp_f32", t0, t0), ("v_rcp_f32", t1, t1),
                  ("v_mul_f32", g0, g0, t0), ("v_mul_f32", g1, g1, t1),
                  ("v_cvt_pk_bf16_f32", t0, g0, g1),
                  ("v_lshlrev_b32", g0, 16, t0), ("v_and_b32", g1, 0xffff0000, t0),
                  ("v_mul_f32", g0, g0, u0), ("v_mul_f32", g1, g1, u1),
                  ("v_cvt_pk_bf16_f32", V(8 + 4 * u + p), g0, g1)])
        fepi += interleave(*chains)
        fepi.append(lambda u=u: a.bstore("buffer_store_dwordx4", V(8 + 4 * u, 4), vL16, WS_, sT, u * 1024))
    fepi.append(lambda: stamp(a, 'ffn', WS_))
    OACC = [V(16 * d, 16) for d in range(4)]
    SP = [V(64, 16), V(80, 16)]
    E = V(96, 16); NEG = V(112, 16)
    PP = [V(160, 8), V(168, 8)]
    LL = [V(176, 2), V(178, 2)]
    VA, VAh = V(180), V(181)
    tA, tB = V(182), V(183)
    rare = []
    def slot_off(n): return ((8 + n // 2) % 4) * SLOT
    def chk(n):
        def f():
            a.v("v_add_f32", tA, LL[n % 2][0], LL[n % 2][1])
            a.v("v_cmp_lt_f32", VCC, sThr, tA)
            a.s("s_cmp_lg_u64", VCC, 0)
            a.raw(f"s_cbranch_scc1 L_rare{n}", "branch")
            a.label(f"L_back{n}")
            rare.append(n)
        return f
    def b_ops(n):
        S_ = SP[n % 2]; Ln = LL[n % 2]; Lo = LL[(n + 1) % 2]
        ops = []
        for i in range(8):
            ops.append(("v_exp_f32", E[2 * i], S_[2 * i]))
            ops.append(("v_exp_f32", E[2 * i + 1], S_[2 * i + 1]))
            if i > 0:
                ops.append(("v_add_f32", Ln[0], (Lo if i == 1 else Ln)[0], E[2 * i - 2]))
                ops.append(("v_add_f32", Ln[1], (Lo if i == 1 else Ln)[1], E[2 * i - 1]))
        ops.append(("v_add_f32", Ln[0], Ln[0], E[14]))
        ops.append(("v_add_f32", Ln[1], Ln[1], E[15]))
        ops.append(chk(n))
        for i in range(8):
            ops.append(("v_cvt_pk_bf16_f32", PP[n % 2][i], E[2 * i], E[2 * i + 1]))
        return ops
    def itemsA(n, pre=None, fills=None):
        for t in range(8):
            off = slot_off(n) + (t >> 1) * 4096 + (n % 2) * 2048
            r = lohi(KA1, KA1h, off) if t & 1 else lohi(KA0, KA0h, off)
            item(8 + n // 2, [("ds_read_b128", (0, 4)) + r], SP[n % 2], Qf(t), (0 if n == 0 else NEG) if t == 0 else SP[n % 2],
                 pre=pre if t == 0 else None, fill=fills[t] if fills else None)
    def itemsC(n, fills=None):
        for i in range(8):
            half, dt = i // 4, i % 4
            rds = [("ds_read_b64_tr_b16", (2 * sec, 2)) + lohi(VA, VAh, slot_off(n) + 16384 + dt * 4096 + (32 * (n % 2) + 16 * half + 8 * sec) * 64) for sec in range(2)]
            item(8 + n // 2, rds, OACC[dt], PP[n % 2].sub(4 * half, 4), 0 if (n == 0 and half == 0) else OACC[dt],
                 fill=fills[i] if fills else None)
    def split(ops, k, start=0):
        n = 8 - start
        out = [[] for _ in range(8)]
        for j in range(n):
            out[start + j] = ops[len(ops) * j // n: len(ops) * (j + 1) // n]
        return out
    vbase = fepi + tr_base(VA, 4, 64, 32) + [("v_add_u32", VAh, 0x10000, VA), lambda: a.s("s_mov_b32", sThr, f32(2.0 ** 30))]
    itemsA(0, pre=vbase)
    S0 = SP[0]
    t0ops = [("v_max3_f32", tA, S0[0], S0[1], S0[2])]
    for i in range(3, 15, 2): t0ops.append(("v_max3_f32", tA, S0[i], S0[i + 1], tA))
    t0ops += [("v_max_f32", tA, tA, S0[15]), ("v_mov_b32", tB, tA), lambda: a.permswap(tA, tB), ("v_max_f32", tA, tA, tB)]
    t0ops += [("v_sub_f32", NEG[r], 0, tA) for r in range(16)]
    t0ops += [("v_sub_f32", S0[r], S0[r], tA) for r in range(16)]
    t0ops += [("v_mov_b32", LL[1][0], 0), ("v_mov_b32", LL[1][1], 0)]
    pend = b_ops(0)
    for n in range(16):
        if n + 1 < 16:
            itemsA(n + 1, pre=t0ops if n == 0 else None, fills=split(pend, 8))
            prec = None
        else:
            prec = pend
        nxt = b_ops(n + 1) if n + 1 < 16 else []
        first, pend = nxt[:20], nxt[20:]
        k0 = len(items)
        itemsC(n, fills=split(first, 8, 3))
        if prec: items[k0]["pre"] = prec

    last_of_chunk = {}
    for i, it in enumerate(items): last_of_chunk[it["chunk"]] = i
    synced = set()
    def sync(ci, i):
        if FINE: stamp(a, f'c{ci}pre', WS_)
        a.wait_vm(f"c{ci}")
        a.barrier()
        if FINE: stamp(a, f'c{ci}bar', WS_)
        synced.add(ci)
        done = -1
        while done + 1 < 16 and last_of_chunk[done + 1] <= i: done += 1
        while issued[0] <= min(done + 4, 15):
            dmaq.extend((issued[0], g) for g in chunk_groups(issued[0])); issued[0] += 1
            if issued[0] == 3: dmaq.extend((3, g) for g in side_groups())
    def reads(j, i):
        it = items[j]
        if it["chunk"] not in synced:
            while dmaq and dmaq[0][0] <= it["chunk"]: dmaq.pop(0)[1]()
            sync(it["chunk"], i)
        for op, (so, sn), r, off in it["reads"]:
            a.ds_read(op, pool[j % NB].sub(so, sn), r, off)
    def side_exec():
        vS = V(200)
        emit(tr_base(vS, 4, 1024, 32))
        a.s("s_lshl_b32", sT, sWave, 7)
        a.s("s_add_u32", sT, sT, SIDE)
        a.v("v_add_u32", vS, sT, vS)
        a.s("s_mul_i32", sT, sWave, 2 * KS_W * 1024)
        a.s("s_lshl_b32", sT2, S(2), 10)
        a.s("s_add_u32", sT, sT, sT2)
        a.s("s_add_u32", sT, sT, WFRAG_OFF)
        a.s("s_add_u32", sT2, sT, KS_W * 1024)
        b = V(204, 4)
        for m in range(2):
            for e in range(2):
                a.ds_read("ds_read_b64_tr_b16", b.sub(0, 2), vS, m * 16384 + e * 64)
                a.ds_read("ds_read_b64_tr_b16", b.sub(2, 2), vS, m * 16384 + e * 64 + 8 * 1024)
                a.bstore("buffer_store_dwordx4", b, vL16, WS_, sT2 if e else sT)
            if m == 0:
                a.s("s_add_u32", sT, sT, 256 * 1024)
                a.s("s_add_u32", sT2, sT2, 256 * 1024)
                a.s("s_cmp_ge_u32", S(2), 86)
                a.s("s_cselect_b32", sT, 0x40000000, sT)
                a.s("s_cselect_b32", sT2, 0x40000000, sT2)
    for j in range(NB): reads(j, -1)
    for i, it in enumerate(items):
        emit(it["pre"])
        a.mfma(it["D"], pool[i % NB], it["B"], it["C"])
        if i + NB < len(items): reads(i + NB, i)
        if dmaq and i % DMARATE == 0: dmaq.pop(0)[1]()
        emit(it["fill"])
        if i == SIDEAT: side_exec()
    stamp(a, 'vph', WS_)
    Lf = LL[15 % 2]
    a.v("v_add_f32", tA, Lf[0], Lf[1])
    a.v("v_mov_b32", tB, tA)
    a.permswap(tA, tB)
    a.v("v_add_f32", tA, tA, tB)
    a.v("v_rcp_f32", tA, tA)
    a.s("s_lshl_b32", sT, sHead, 13)
    a.s("s_add_u32", sT, sT, sAct)
    a.s("s_add_u32", sT2, sT, 4096)
    for d in range(4):
        for r in range(16):
            a.v("v_mul_f32", OACC[d][r], OACC[d][r], tA)
        for i in range(8):
            a.v("v_cvt_pk_bf16_f32", V(64 + 8 * d + i), OACC[d][2 * i], OACC[d][2 * i + 1])
        for hf in range(2):
            t = 2 * d + hf
            a.bstore("buffer_store_dwordx4", V(64 + 8 * d + 4 * hf, 4), vL16, WS_, sT if t < 4 else sT2, (t % 4) * 1024)
    if STAMP: a.raw("s_waitcnt vmcnt(0)")
    stamp(a, 'end', WS_); stamp(a, 'RTend', WS_, True)
    a.label("L_attn_end")
    a.raw("s_endpgm", "end")
    txt = a.text()
    for n in rare:
        S_ = SP[n % 2]; Sn = SP[(n + 1) % 2]; Ln = LL[n % 2]; Lo = LL[(n + 1) % 2]
        L = [f"L_rare{n}:", "s_nop 15", "s_nop 15"]
        L.append(f"v_max3_f32 {tA}, {S_[0]}, {S_[1]}, {S_[2]}")
        for i in range(3, 15, 2): L.append(f"v_max3_f32 {tA}, {S_[i]}, {S_[i+1]}, {tA}")
        L.append(f"v_max_f32 {tA}, {tA}, {S_[15]}")
        L.append(f"v_mov_b32 {tB}, {tA}")
        L.append("s_nop 3")
        L.append(f"v_permlane32_swap_b32 {tA}, {tB}")
        L.append("s_nop 3")
        L.append(f"v_max3_f32 {tA}, {tA}, {tB}, 0")
        L.append(f"v_sub_f32 {tB}, 0, {tA}")
        L.append(f"v_exp_f32 {tB}, {tB}")
        L.append("s_nop 3")
        for r in range(64): L.append(f"v_mul_f32 v{r}, v{r}, {tB}")
        L.append(f"v_mul_f32 {Lo[0]}, {Lo[0]}, {tB}")
        L.append(f"v_mul_f32 {Lo[1]}, {Lo[1]}, {tB}")
        for r in range(16):
            L.append(f"v_sub_f32 {S_[r]}, {S_[r]}, {tA}")
            L.append(f"v_sub_f32 {NEG[r]}, {NEG[r]}, {tA}")
            if n + 1 < 16: L.append(f"v_sub_f32 {Sn[r]}, {Sn[r]}, {tA}")
        for r in range(16): L.append(f"v_exp_f32 {E[r]}, {S_[r]}")
        L.append("s_nop 3")
        L.append(f"v_add_f32 {Ln[0]}, {Lo[0]}, {E[0]}")
        L.append(f"v_add_f32 {Ln[1]}, {Lo[1]}, {E[1]}")
        for i in range(1, 8):
            L.append(f"v_add_f32 {Ln[0]}, {Ln[0]}, {E[2*i]}")
            L.append(f"v_add_f32 {Ln[1]}, {Ln[1]}, {E[2*i+1]}")
        L.append("s_nop 7")
        L.append(f"s_branch L_back{n}")
        txt += "\n".join(("" if l.endswith(":") else "    ") + l for l in L) + "\n"
    return txt
```

```python
import sys
from asmlib import *
from common import *
from gen3_attn import gen_attn
from gen3_fin import gen_gemm, gen_red
from gen3_ln import gen_ln
def gen_final():
    a = Asm()
    sWave, sQb, sNb, sT, sT2, sA0, sA1, sW0, sW1, sLast = [S(i) for i in range(4, 14)]
    WS_, X_, O_ = S(40, 4), S(44, 4), S(48, 4)
    vLane, vL16, vTmp, vT2 = V(240), V(241), V(242), V(243)
    a.s("s_cmp_ge_u32", S(2), 256)
    a.raw("s_cbranch_scc1 L_fin_end", "branch")
    a.smem("s_load_dwordx2", S(16, 2), S(0, 2), 0)
    a.smem("s_load_dwordx2", S(18, 2), S(0, 2), 72)
    a.smem("s_load_dwordx2", S(20, 2), S(0, 2), 88)
    a.v("v_and_b32", vLane, 63, V(0))
    a.v("v_lshrrev_b32", vTmp, 6, V(0))
    a.v("v_readfirstlane_b32", sWave, vTmp)
    a.v("v_mov_b32", V(244), V(0))
    a.v("v_lshlrev_b32", vL16, 4, vLane)
    a.s("s_and_b32", sT, S(2), 7)
    a.s("s_lshr_b32", sT2, S(2), 3)
    a.s("s_and_b32", sQb, sT, 3); a.s("s_lshl_b32", sQb, sQb, 3)
    a.s("s_and_b32", sNb, sT2, 7); a.s("s_add_u32", sQb, sQb, sNb)
    a.s("s_lshr_b32", sNb, sT, 2); a.s("s_lshl_b32", sNb, sNb, 2)
    a.s("s_lshr_b32", sT2, sT2, 3); a.s("s_add_u32", sNb, sNb, sT2)
    if "--k4same" in sys.argv:
        a.s("s_mov_b32", sQb, 0); a.s("s_mov_b32", sNb, 0)
    a.s("s_mul_i32", sT, sWave, 43)
    if "--k4dup" in sys.argv:
        a.s("s_and_b32", sT, sWave, 3); a.s("s_mul_i32", sT, sT, 43); a.s("s_add_u32", sT, sT, 2)
    if "--k4dup2" in sys.argv:
        a.s("s_lshr_b32", sT, sWave, 1); a.s("s_mul_i32", sT, sT, 43); a.s("s_add_u32", sT, sT, 2)
    a.s("s_cmp_ge_u32", sWave, 5); a.s("s_cselect_b32", sT2, 1, 0); a.s("s_sub_u32", sT, sT, sT2)
    a.s("s_cmp_ge_u32", sWave, 6); a.s("s_cselect_b32", sT2, 1, 0); a.s("s_sub_u32", sT, sT, sT2)
    a.s("s_lshl_b32", sT, sT, 10)
    a.s("s_mul_i32", sA0, sQb, 2 * KS_ACT * 1024); a.s("s_add_u32", sA0, sA0, sT)
    a.s("s_add_u32", sA1, sA0, KS_ACT * 1024)
    a.s("s_mul_i32", sW0, sNb, 2 * KS_W * 1024); a.s("s_add_u32", sW0, sW0, sT); a.s("s_add_u32", sW0, sW0, WFRAG_OFF)
    a.s("s_add_u32", sW1, sW0, KS_W * 1024)
    a.s("s_sub_u32", sT, sWave, 4); a.s("s_cmp_lt_u32", sT, 2); a.s("s_cselect_b32", sLast, 0x40000000, 0)
    a.raw("s_waitcnt lgkmcnt(0)")
    srd(a, X_, S(16), S(17), 2097152)
    srd(a, O_, S(18), S(19), 2097152)
    srd(a, WS_, S(20), S(21), 268435456)
    D = 10 if '--k4d10' in sys.argv else 8
    ACC = [[V(16 * (2 * nt + qt), 16) for qt in range(2)] for nt in range(2)]
    st = lambda k: [V(64 + 16 * (k % D) + 4 * i, 4) for i in range(4)]
    def load(k):
        if k and k % 4 == 0:
            for r in (sA0, sA1, sW0, sW1): a.s("s_add_u32", r, r, 4096)
        if k == 42:
            a.s("s_add_u32", sW0, sW0, sLast); a.s("s_add_u32", sW1, sW1, sLast)
        b = st(k)
        for i, r in enumerate((sA0, sA1, sW0, sW1)):
            ex = "nt" if "--k4nt" in sys.argv else ("sc1" if "--k4sc1" in sys.argv else ("sc0 sc1" if "--k4sc01" in sys.argv else ""))
            a.bload("buffer_load_dwordx4", b[i], vL16, WS_, r, (k % 4) * 1024, extra=ex)
    for k in range(D): load(k)
    a.v("v_lshrrev_b32", vTmp, 3, V(244))
    a.v("v_and_b32", vT2, 7, V(244))
    a.s("s_lshl_b32", sT, sQb, 16); a.s("s_lshl_b32", sT2, sNb, 7); a.s("s_add_u32", sT, sT, sT2)
    a.v("v_lshlrev_b32", V(245), 10, vTmp)
    a.v("v_lshl_add_u32", V(245), vT2, 4, V(245))
    a.v("v_add_u32", V(245), sT, V(245))
    a.bload("buffer_load_dwordx4", V(232, 4), V(245), X_, 0, 0)
    for k in range(43):
        b = st(k)
        for nt in range(2):
            for qt in range(2):
                a.mfma(ACC[nt][qt], b[2 + nt], b[qt], 0 if k == 0 else ACC[nt][qt])
        if k + D < 43: load(k + D)
    a.s("s_mul_i32", sT, sWave, 16 * 1040)
    a.v("v_add_u32", vTmp, sT, vL16)
    for nt in range(2):
        for qt in range(2):
            for q4 in range(4):
                blk = (nt * 2 + qt) * 4 + q4
                a.ds_write("ds_write_b128", vTmp, ACC[nt][qt].sub(4 * q4, 4), blk * 1040)
    tid = V(244)
    a.v("v_lshrrev_b32", vTmp, 3, tid)
    a.v("v_and_b32", vT2, 7, tid)
    a.v("v_lshrrev_b32", V(246), 2, vT2)
    a.v("v_lshlrev_b32", V(246), 1, V(246))
    a.v("v_lshrrev_b32", V(247), 5, vTmp)
    a.v("v_add_u32", V(246), V(246), V(247))
    a.v("v_lshlrev_b32", V(246), 2, V(246))
    a.v("v_and_b32", V(247), 3, vT2)
    a.v("v_add_u32", V(246), V(246), V(247))
    a.v("v_mul_u32_u24", V(246), 1040, V(246))
    a.v("v_and_b32", V(247), 31, vTmp)
    a.v("v_lshl_add_u32", V(246), V(247), 4, V(246))
    a.v("v_add_u32", V(247), 0x10000, V(246))
    a.wait_lgkm0()
    a.barrier()
    for w in range(8):
        for hh in range(2):
            off = w * 16 * 1040 + hh * 512
            if off < 65536: a.ds_read("ds_read_b128", V(8 * w + 4 * hh, 4), V(246), off)
            else: a.ds_read("ds_read_b128", V(8 * w + 4 * hh, 4), V(247), off - 65536)
    for e in range(8):
        a.v("v_add_f32", V(e), V(e), V(8 + e)); a.v("v_add_f32", V(16 + e), V(16 + e), V(24 + e))
        a.v("v_add_f32", V(32 + e), V(32 + e), V(40 + e)); a.v("v_add_f32", V(48 + e), V(48 + e), V(56 + e))
    for e in range(8):
        a.v("v_add_f32", V(e), V(e), V(16 + e))
    for e in range(8):
        a.v("v_add_f32", V(e), V(e), V(32 + e))
    a.s("s_mov_b32", sT, f32(-LOG2E))
    chains = []
    for p in range(4):
        s0, s1, d0, d1 = V(2 * p), V(2 * p + 1), V(48 + 2 * p), V(49 + 2 * p)
        t0, t1, x0, x1 = V(64 + 4 * p), V(65 + 4 * p), V(66 + 4 * p), V(67 + 4 * p)
        xin = V(232 + p)
        chains.append([("v_cvt_pk_bf16_f32", t0, s0, s1), ("v_cvt_pk_bf16_f32", t1, d0, d1),
                       ("v_lshlrev_b32", s0, 16, t0), ("v_and_b32", s1, 0xffff0000, t0),
                       ("v_lshlrev_b32", d0, 16, t1), ("v_and_b32", d1, 0xffff0000, t1),
                       ("v_mul_f32", t0, sT, d0), ("v_mul_f32", t1, sT, d1),
                       ("v_exp_f32", t0, t0), ("v_exp_f32", t1, t1),
                       ("v_add_f32", t0, 1.0, t0), ("v_add_f32", t1, 1.0, t1),
                       ("v_rcp_f32", t0, t0), ("v_rcp_f32", t1, t1),
                       ("v_mul_f32", d0, d0, t0), ("v_mul_f32", d1, d1, t1),
                       ("v_cvt_pk_bf16_f32", t0, d0, d1),
                       ("v_lshlrev_b32", d0, 16, t0), ("v_and_b32", d1, 0xffff0000, t0),
                       ("v_mul_f32", s0, s0, d0), ("v_mul_f32", s1, s1, d1),
                       ("v_cvt_pk_bf16_f32", t0, s0, s1),
                       ("v_lshlrev_b32", s0, 16, t0), ("v_and_b32", s1, 0xffff0000, t0),
                       ("v_lshlrev_b32", x0, 16, xin), ("v_and_b32", x1, 0xffff0000, xin),
                       ("v_add_f32", s0, s0, x0), ("v_add_f32", s1, s1, x1),
                       ("v_cvt_pk_bf16_f32", V(96 + p), s0, s1)])
    for o in interleave(*chains): a.v(*o)
    a.bstore("buffer_store_dwordx4", V(96, 4), V(245), O_, 0, 0)
    a.label("L_fin_end")
    a.raw("s_endpgm", "end")
    return a.text()

HEADER = open("recurrent_scan__sliding_block_cached__geglu_ffn__prompt.s.ref").read().split("; Override launch")[0]

def kd(name, vg=256):
    return f""".section .rodata,"a"
.p2align 6
.amdhsa_kernel {name}
  .amdhsa_next_free_vgpr {vg}
  .amdhsa_next_free_sgpr 102
  .amdhsa_accum_offset {vg}
  .amdhsa_group_segment_fixed_size 0
  .amdhsa_kernarg_size 96
  .amdhsa_user_sgpr_count 2
  .amdhsa_user_sgpr_kernarg_segment_ptr 1
  .amdhsa_system_sgpr_workgroup_id_x 1
.end_amdhsa_kernel
"""

def main():
    out = HEADER
    out += "; @launch kernel=attn_kernel grid=(256,1,1) block=(512,1,1) lds=163840\n"
    if "--newfin" not in sys.argv:
        out += "; @launch kernel=final_kernel grid=(256,1,1) block=(512,1,1) lds=133120\n"
        ks = (("attn_kernel", gen_attn, 256), ("final_kernel", gen_final, 256))
    else:
        out += "; @launch kernel=gemm_kernel grid=(256,1,1) block=(512,1,1) lds=163840\n"
        out += "; @launch kernel=red_kernel grid=(256,1,1) block=(512,1,1) lds=0\n"
        ks = (("attn_kernel", gen_attn, 256), ("gemm_kernel", gen_gemm, 256), ("red_kernel", gen_red, 112))
    out += '.amdgcn_target "amdgcn-amd-amdhsa--gfx950"\n.text\n'
    for name, g, vg in ks:
        out += f".globl {name}\n.p2align 8\n.type {name},@function\n{name}:\n" + g()
    for name, g, vg in ks: out += kd(name, vg)
    dst = sys.argv[1] if len(sys.argv) > 1 and not sys.argv[1].startswith("--") else "recurrent_scan__sliding_block_cached__geglu_ffn__prompt.s"
    open(dst, "w").write(out)
    if STAMP: open("stamp_names.txt", "w").write("\n".join(stamp_names))
    print("wrote", dst, len(out), "bytes", out.count("\n"), "lines")
main()
```

```python
import struct

class V:
    def __init__(s, i, n=1): s.i, s.n = i, n
    def __str__(s): return f"v{s.i}" if s.n == 1 else f"v[{s.i}:{s.i+s.n-1}]"
    def regs(s): return set(range(s.i, s.i + s.n))
    def __getitem__(s, k): return V(s.i + k)
    def sub(s, k, n): return V(s.i + k, n)

class S:
    def __init__(s, i, n=1): s.i, s.n = i, n
    def __str__(s): return f"s{s.i}" if s.n == 1 else f"s[{s.i}:{s.i+s.n-1}]"
    def regs(s): return set(range(s.i, s.i + s.n))
    def __getitem__(s, k): return S(s.i + k)

class Neg:
    def __init__(s, r): s.r = r
    def __str__(s): return "-" + str(s.r)

class Sp:
    def __init__(s, name): s.name = name
    def __str__(s): return s.name
VCC = Sp("vcc"); EXEC = Sp("exec"); M0 = Sp("m0")

def f32(x):
    return "0x%08x" % struct.unpack("<I", struct.pack("<f", x))[0]

TRANS = ("v_exp_f32", "v_rcp_f32", "v_rsq_f32", "v_sqrt_f32", "v_log_f32")

class Ins:
    def __init__(s, text, kind):
        s.text = text; s.kind = kind
        s.vr = set(); s.vw = set(); s.sr = set(); s.sw = set()
        s.op = text.split()[0]
        s.srcc = None
        s.ab = set()
        s.d = None
        s.tag = None
        s.states = 1
        s.skip = False

class Asm:
    def __init__(s):
        s.ins = []
        s.mark = None
    def cond_begin(s): s.mark = len(s.ins)
    def cond_end(s):
        for I in s.ins[s.mark:]: I.skip = True
        s.mark = None
    def _add(s, op, dsts, srcs, kind, mods=""):
        ops = list(dsts) + list(srcs)
        text = op + " " + ", ".join(str(o) for o in ops)
        if mods: text += " " + mods
        I = Ins(text, kind)
        for d in dsts:
            if isinstance(d, V): I.vw |= d.regs()
            elif isinstance(d, S): I.sw |= d.regs()
            elif isinstance(d, Sp): I.sw.add(d.name)
        for o in srcs:
            if isinstance(o, Neg): o = o.r
            if isinstance(o, V): I.vr |= o.regs()
            elif isinstance(o, S): I.sr |= o.regs()
            elif isinstance(o, Sp): I.sr.add(o.name)
        s.ins.append(I)
        return I
    def raw(s, text, kind="salu"):
        I = Ins(text, kind); s.ins.append(I); return I
    def label(s, name):
        I = Ins(name + ":", "label"); I.states = 0; s.ins.append(I)
    def comment(s, c):
        I = Ins("; " + c, "comment"); I.states = 0; s.ins.append(I)
    def v(s, op, dst, *srcs, mods=""):
        if op.startswith("v_mfma"): raise Exception("use mfma")
        kind = "valu"
        if op in TRANS: kind = "trans"
        if op.startswith("v_dot"): kind = "dot"
        if op.startswith("v_readfirstlane") or op.startswith("v_readlane"): kind = "readlane"
        I = s._add(op, [dst], srcs, kind, mods)
        if op.startswith("v_fmac") or op.startswith("v_dot2c"): I.vr |= dst.regs()
        if op.startswith("v_cndmask") and len(srcs) == 2: I.sr.add("vcc")
        return I
    def permswap(s, a, b):
        I = s._add("v_permlane32_swap_b32", [a], [b], "permlane")
        I.vr |= a.regs(); I.vw |= b.regs()
        return I
    def mfma(s, d, a, b, c):
        I = s._add("v_mfma_f32_32x32x16_bf16", [d], [a, b, c], "mfma")
        I.ab = a.regs() | b.regs()
        I.d = (d.i, d.n)
        if isinstance(c, V): I.srcc = (c.i, c.n)
        return I
    def s(s_, op, dst, *srcs):
        if op.startswith("s_cmp"):
            return s_._add(op, [], [dst] + list(srcs), "salu")
        return s_._add(op, [dst], srcs, "salu")
    def smem(s, op, dst, base, off):
        return s._add(op, [dst], [base, off], "smem")
    def ds_read(s, op, dst, addr, off=0):
        assert 0 <= off < 65536, off
        import sys
        if "--nolds" in sys.argv and getattr(s, "nolds_on", False): return None
        return s._add(op, [dst], [addr], "ldsr", f"offset:{off}" if off else "")
    def ds_write(s, op, addr, data, off=0):
        assert 0 <= off < 65536, off
        return s._add(op, [], [addr, data], "ldsw", f"offset:{off}" if off else "")
    def bload(s, op, dst, voff, srd, soff=0, off=0, tag=None, extra=""):
        assert 0 <= off < 4096
        I = s._add(op, [dst], [voff, srd, soff], "vload", ("offen" + (f" offset:{off}" if off else "") + (" " + extra if extra else "")))
        I.tag = tag; return I
    def dma(s, voff, srd, soff=0, off=0, tag=None, extra="", cond=False):
        assert 0 <= off < 4096
        I = s._add("buffer_load_dwordx4", [], [voff, srd, soff], "dma", "offen" + (f" offset:{off}" if off else "") + " lds" + (" " + extra if extra else ""))
        I.sr.add("m0")
        I.tag = tag; I.cond = cond; return I
    def bstore(s, op, data, voff, srd, soff=0, off=0, tag=None, extra=""):
        assert 0 <= off < 4096
        I = s._add(op, [], [data, voff, srd, soff], "vstore", "offen" + (f" offset:{off}" if off else "") + (" " + extra if extra else ""))
        I.data = data.regs(); I.wide = data.n >= 3
        I.tag = tag; return I
    def wait_vm(s, tag):
        I = Ins("WAITVM", "waitvm"); I.tag = tag; I.states = 0; s.ins.append(I)
    def wait_lgkm0(s):
        I = Ins("WAITLGKM0", "waitlgkm0"); I.states = 0; s.ins.append(I)
    def touch(s, regs):
        I = Ins("TOUCH", "touch"); I.states = 0
        for r in regs: I.vr |= r.regs()
        s.ins.append(I)
    def barrier(s):
        s.raw("s_barrier", "barrier")
    def nop(s, n):
        I = s.raw(f"s_nop {n}", "nop"); I.states = n + 1

    def insert_waits(s):
        out = []
        lq = []
        vq = []
        def emit_wait(vm=None, lg=None):
            t = "s_waitcnt"
            if vm is not None: t += f" vmcnt({vm})"
            if lg is not None: t += f" lgkmcnt({lg})"
            out.append(Ins(t, "wait"))
        for I in s.ins:
            if I.kind == "waitvm":
                idx = max([k for k, e in enumerate(vq) if e[1] == I.tag], default=-1)
                if idx >= 0:
                    n = len(vq) - idx - 1
                    if not vq[idx][2]: n = sum(1 for e in vq[idx + 1:] if not e[2])
                    assert n <= 63
                    emit_wait(vm=n); del vq[:idx + 1]
                continue
            if I.kind == "waitlgkm0":
                if lq: emit_wait(lg=0); lq.clear()
                continue
            if I.kind in ("label", "comment"):
                out.append(I); continue
            regs = I.vr | I.vw
            vmn = lgn = None
            idx = max([k for k, e in enumerate(lq) if e & regs], default=-1)
            if idx >= 0:
                lgn = len(lq) - idx - 1; del lq[:idx + 1]
            idx = max([k for k, e in enumerate(vq) if e[0] & regs], default=-1)
            if idx >= 0:
                vmn = sum(1 for e in vq[idx + 1:] if not e[2]); del vq[:idx + 1]
                assert vmn <= 63
            if I.kind in ("ldsr", "ldsw") and len(lq) >= 15:
                k = len(lq) - 14
                lgn = min(lgn, 14) if lgn is not None else 14
                del lq[:k]
            if I.kind in ("vload", "dma", "vstore") and len(vq) >= 62:
                k = len(vq) - 61
                vmn = min(vmn, 61) if vmn is not None else 61
                del vq[:k]
            if vmn is not None or lgn is not None:
                assert not I.skip
                emit_wait(vmn, lgn)
            if I.kind == "touch": continue
            out.append(I)
            if I.kind == "ldsr": lq.append(set(I.vw))
            elif I.kind == "ldsw": lq.append(set())
            elif I.kind == "vload": vq.append((set(I.vw), I.tag, False))
            elif I.kind in ("dma", "vstore"): vq.append((set(), I.tag, getattr(I, "cond", False)))
        s.ins = out

    def fix_hazards(s):
        out = []
        VAL = ("valu", "trans", "dot", "permlane", "readlane")
        def need(P, C):
            n = 0
            pk, ck = P.kind, C.kind
            if pk in VAL:
                if ck == "mfma" and (P.vw & C.vr): n = max(n, 2)
                if ck == "permlane" and (P.vw & C.vr): n = max(n, 2)
                if ck == "readlane" and (P.vw & C.vr): n = max(n, 1)
                if pk == "trans" and ck in VAL and ck != "trans" and (P.vw & C.vr): n = max(n, 1)
                if pk == "dot" and ck in VAL + ("mfma", "vstore", "ldsw", "vload", "ldsr", "dma") and (P.vw & (C.vr | C.vw)):
                    n = max(n, 0 if (C.op == P.op and False) else 3)
                if P.sw:
                    if ck in VAL + ("mfma",) and (P.sw & C.sr): n = max(n, 2)
                    if ck in ("vload", "vstore", "dma") and (P.sw & C.sr): n = max(n, 5)
                    if ck in ("salu",) and (P.sw & C.sr): n = max(n, 2)
            if pk == "mfma":
                D = set(range(P.d[0], P.d[0] + P.d[1]))
                if ck == "mfma":
                    if D & C.ab: n = max(n, 12)
                    if C.srcc is not None:
                        cs = set(range(C.srcc[0], C.srcc[0] + C.srcc[1]))
                        if cs & D and C.srcc != P.d: n = max(n, 10)
                elif ck in VAL + ("vstore", "ldsw", "vload", "ldsr", "dma"):
                    if D & (C.vr | C.vw): n = max(n, 12)
                if P.srcc is not None and ck in VAL:
                    cs = set(range(P.srcc[0], P.srcc[0] + P.srcc[1]))
                    if cs & C.vw: n = max(n, 7)
            if pk == "salu" and "m0" in P.sw and ck == "dma": n = max(n, 1)
            if pk == "vstore" and getattr(P, "wide", False):
                if P.data & C.vw: n = max(n, 2)
            return n
        for I in s.ins:
            if I.kind in ("label", "comment"):
                out.append(I); continue
            req = 0
            dist = 0
            for P in reversed(out[-60:]):
                if P.kind in ("label", "comment"): continue
                nd = need(P, I)
                if nd > dist: req = max(req, nd - dist)
                if not (P.skip and not I.skip): dist += P.states
                if dist > 24: break
            while req > 0:
                k = min(req, 16)
                N = Ins(f"s_nop {k-1}", "nop"); N.states = k; N.skip = I.skip; out.append(N); req -= k
            out.append(I)
        s.ins = out

    def text(s):
        s.insert_waits(); s.fix_hazards()
        lines = []
        for I in s.ins:
            if I.kind == "label": lines.append(I.text)
            else: lines.append("    " + I.text)
        return "\n".join(lines) + "\n"
```

```python
import sys
from asmlib import *
from common import *
from gen3_ln import XN_OFF

def argval(n, d):
    for x in sys.argv:
        if x.startswith(f'--{n}='): return int(x.split('=')[1])
    return d
DMARATE = argval('dmarate', 2)
SIDEAT = argval('sideat', 110)
WB = argval('wb', 4)
def gen_attn():
    a = Asm()
    sWave, sHead, sQblk, sU0, sT, sT2, sM0b, sFb, sOnes, sL2E = [S(i) for i in range(4, 14)]
    sT3 = S(15); sKVb = S(89); sThr = S(90); sD = S(91); sAct = S(84)
    X_, K_, WQ_, WO_, WD_, WS_, WG_, V_, WU_ = [S(40 + 4 * i, 4) for i in range(9)]
    vDV = V(251)
    vLane, vL16, vDW, vDF, vDK = V(240), V(241), V(242), V(243), V(244)
    vM, vR = V(245), V(246)
    B0, B1, B2, B3 = V(247), V(248), V(249), V(250)
    vTmp, vT2, vT3 = V(252), V(253), V(254)
    X = lambda t: V(4 * t, 4)
    NB = 8
    pool = [V(208 + 4 * i, 4) for i in range(NB)]

    a.s("s_cmp_ge_u32", S(2), 256)
    a.raw("s_cbranch_scc1 L_attn_end", "branch")
    a.smem("s_load_dwordx16", S(16, 16), S(0, 2), 0)
    a.smem("s_load_dwordx8", S(32, 8), S(0, 2), 64)
    a.v("v_and_b32", vLane, 63, V(0))
    a.v("v_lshrrev_b32", vTmp, 6, V(0))
    a.v("v_readfirstlane_b32", sWave, vTmp)
    a.s("s_and_b32", sT, S(2), 7)
    a.s("s_lshr_b32", sT2, S(2), 3)
    a.s("s_lshl_b32", sHead, sT, 2)
    a.s("s_and_b32", sT, sT2, 3)
    a.s("s_add_u32", sHead, sHead, sT)
    a.s("s_lshr_b32", sQblk, sT2, 2)
    a.s("s_mul_i32", sT, sHead, 3)
    a.s("s_lshl_b32", sT2, sHead, 1)
    a.s("s_add_u32", sT2, sT2, 22)
    a.s("s_min_u32", sU0, sT, sT2)
    a.s("s_mov_b32", sOnes, 0x3f803f80)
    a.s("s_mov_b32", sL2E, f32(LOG2E * SCALE))
    a.s("s_lshl_b32", sM0b, sWave, 10)
    a.v("v_lshlrev_b32", vL16, 4, vLane)
    a.v("v_lshrrev_b32", vTmp, 5, vLane)
    a.v("v_and_b32", vT2, 31, vLane)
    a.v("v_xor_b32", vT2, vT2, vTmp)
    a.v("v_lshlrev_b32", vT2, 4, vT2)
    a.v("v_lshl_add_u32", V(224), vTmp, 10, vT2)
    for i in range(1, 8): a.v("v_xor_b32", V(224 + i), 32 * i, V(224))
    a.s("s_lshl_b32", sT, sQblk, 8)
    a.s("s_lshl_b32", sT2, sWave, 5)
    a.s("s_add_u32", sT, sT, sT2)
    a.s("s_lshl_b32", S(85), sT, 10)
    a.s("s_lshl_b32", S(83), sWave, 14)
    a.s("s_add_u32", S(83), S(83), 32768)
    a.raw("s_waitcnt lgkmcnt(0)")
    srd(a, X_, S(16), S(17), 2097152)
    def x_round(rd):
        for n in range(16):
            a.s("s_add_u32", sT, S(85), n * 2048)
            a.s("s_add_u32", M0, S(83), n * 1024 - rd * 512)
            a.dma(V(224 + (n & 7)), X_, sT, rd * 512, tag=f"x{rd}")
    x_round(0)
    a.s("s_and_b32", sT3, sWave, 3)
    a.s("s_lshl_b32", sT, sT3, 5)
    a.v("v_lshrrev_b32", vTmp, 2, vLane)
    a.v("v_add_u32", vTmp, sT, vTmp)
    a.v("v_and_b32", vT2, 3, vLane)
    a.v("v_lshlrev_b32", vT3, 4, vT2)
    a.v("v_lshl_add_u32", vDW, vTmp, 13, vT3)
    a.s("s_lshl_b32", sT, sT3, 4)
    a.v("v_lshrrev_b32", vTmp, 2, vLane)
    a.v("v_add_u32", vTmp, sT, vTmp)
    a.v("v_lshl_add_u32", vDV, vTmp, 8, vT3)
    a.v("v_bfe_u32", vT3, vLane, 4, 2)
    a.v("v_xor_b32", vT3, vT3, vT2)
    a.v("v_lshlrev_b32", vT3, 4, vT3)
    a.v("v_lshl_add_u32", vDK, vTmp, 8, vT3)
    a.s("s_lshl_b32", sT2, sT3, 5)
    a.v("v_lshrrev_b32", vTmp, 1, vLane)
    a.v("v_add_u32", vTmp, sT2, vTmp)
    a.s("s_mov_b32", sT, 2752)
    a.v("v_mul_lo_u32", vTmp, vTmp, sT)
    a.v("v_and_b32", vT2, 1, vLane)
    a.v("v_lshl_add_u32", vDF, vT2, 4, vTmp)
    a.s("s_lshl_b32", sFb, sT3, 10)
    a.s("s_lshl_b32", sM0b, sT3, 11)
    a.s("s_mul_i32", sT, sHead, 524288)
    a.s("s_add_u32", sT, sT, 393216)
    a.s("s_add_u32", S(80), S(18), sT); a.s("s_addc_u32", S(81), S(19), 0)
    srd(a, K_, S(80), S(81), 131072)
    a.s("s_add_u32", S(80), S(20), sT); a.s("s_addc_u32", S(81), S(21), 0)
    srd(a, V_, S(80), S(81), 131072)
    a.s("s_lshl_b32", sT, sHead, 8)
    a.s("s_add_u32", S(80), S(22), sT); a.s("s_addc_u32", S(81), S(23), 0)
    a.s("s_sub_u32", S(82), 4194304, sT)
    srd(a, WQ_, S(80), S(81), S(82))
    srd(a, WO_, S(24), S(25), 4194304)
    srd(a, WD_, S(32), S(33), 1409024)
    srd(a, WS_, S(38), S(39), 268435456)
    srd(a, WG_, S(28), S(29), 1409024)
    srd(a, WU_, S(30), S(31), 1409024)
    a.s("s_mul_i32", sT, sQblk, 8 * KS_ACT * 1024)
    a.s("s_mul_i32", sT2, sWave, KS_ACT * 1024)
    a.s("s_add_u32", sAct, sT, sT2)
    stamp_init(a, sWave)
    stamp(a, 'start', WS_); stamp(a, 'RTstart', WS_, True)

    lab = [0]
    def condgroup(fs):
        def g():
            lab[0] += 1
            a.s("s_cmp_ge_u32", sWave, 4)
            a.raw(f"s_cbranch_scc1 L_nd{lab[0]}", "branch")
            a.cond_begin()
            for f in fs: f()
            a.cond_end()
            a.label(f"L_nd{lab[0]}")
        return g
    def chunk_groups(ci):
        ty, c = ci // 4, ci % 4
        slot = (ci % 4) * SLOT
        tag = f"c{ci}"
        G = []
        if ty == 1:
            for m, rs in ((0, WG_), (1, WU_)):
                for j in range(3):
                    def g(j=j, m=m, rs=rs):
                        a.s("s_lshl_b32", sD, sU0, 5)
                        a.s("s_add_u32", sD, sD, c * 128 * 2752)
                        a.s("s_add_u32", M0, sFb, slot + m * FMAT + j * 4096 - j * 32)
                        a.dma(vDF, rs, sD, j * 32, tag=tag, cond=True)
                    G.append(g)
        elif ty == 0:
            for rg in range(2):
                for j in range(4):
                    def g(j=j, rg=rg):
                        a.s("s_mov_b32", sD, c * 128 * 8192 + rg * 16 * 8192)
                        a.s("s_add_u32", M0, sM0b, slot + rg * 1024 + j * 8192 - j * 64)
                        a.dma(vDW, WQ_, sD, j * 64, tag=tag, cond=True)
                    G.append(g)
        else:
            for m, (vo, rs) in enumerate(((vDK, K_), (vDV, V_))):
                for j in range(4):
                    def g(j=j, m=m, vo=vo, rs=rs):
                        a.s("s_mov_b32", sD, (ci - 8) * 16384)
                        a.s("s_add_u32", M0, sFb, slot + m * 16384 + j * 4096 - j * 64)
                        a.dma(vo, rs, sD, j * 64, tag=tag, cond=True)
                    G.append(g)
        return [condgroup(G[i:i + 2]) for i in range(0, len(G), 2)]
    def side_groups():
        G = []
        for m, rs in ((0, WO_), (1, WD_)):
            for e in range(2):
                def g(m=m, rs=rs, e=e):
                    a.s("s_lshl_b32", sD, sWave, 11)
                    a.s("s_add_u32", M0, sD, SIDE + m * 16384)
                    a.s("s_lshl_b32", sT3, S(2), 14)
                    a.s("s_add_u32", sD, sD, sT3)
                    a.dma(vL16, rs, sD, e * 1024, tag="side")
                G.append(g)
        return G
    for g in chunk_groups(0): g()
    issued = [1]
    dmaq = []

    def tr_base(dst, rowmul_hh, rowbytes, dhbytes):
        return [("v_lshrrev_b32", vTmp, 5, vLane), ("v_mul_u32_u24", vTmp, rowmul_hh, vTmp),
                ("v_bfe_u32", vT2, vLane, 2, 2), ("v_add_u32", vTmp, vTmp, vT2),
                ("v_mul_u32_u24", vTmp, rowbytes, vTmp), ("v_bfe_u32", vT2, vLane, 4, 1),
                ("v_mul_u32_u24", vT2, dhbytes, vT2), ("v_add_u32", vTmp, vTmp, vT2),
                ("v_and_b32", vT2, 3, vLane), ("v_lshl_add_u32", dst, vT2, 3, vTmp)]
    def emit(ops):
        for o in ops:
            if callable(o): o()
            else: a.v(*o)

    a.v("v_and_b32", vTmp, 31, vLane)
    a.v("v_lshrrev_b32", vT2, 5, vLane)
    a.v("v_and_b32", vT3, 15, vLane)
    a.v("v_xor_b32", vT2, vT2, vT3)
    a.v("v_lshlrev_b32", vT2, 4, vT2)
    a.v("v_lshl_add_u32", B0, vTmp, 9, vT2)
    a.v("v_add_u32", B0, S(83), B0)
    def x_read(rd):
        a.wait_vm(f"x{rd}")
        for t in range(16):
            if t: a.v("v_xor_b32", V(232 + (t & 3)), 32 * t, B0)
            a.ds_read("ds_read_b128", X(16 * rd + t), V(232 + (t & 3)) if t else B0, 0)
    x_read(0)
    a.wait_lgkm0()
    x_round(1)
    stamp(a, 'xA', WS_)
    acc = [V(192 + i) for i in range(8)]
    for r in acc: a.v("v_mov_b32", r, 0)
    for t in range(32):
        if t == 16: x_read(1)
        for r in range(4):
            x = V(4 * t + r)
            a.v("v_dot2_f32_bf16", acc[r], x, sOnes, acc[r])
            a.v("v_dot2_f32_bf16", acc[4 + r], x, x, acc[4 + r])
    a.v("v_add_f32", acc[0], acc[0], acc[1]); a.v("v_add_f32", acc[2], acc[2], acc[3])
    a.v("v_add_f32", acc[4], acc[4], acc[5]); a.v("v_add_f32", acc[6], acc[6], acc[7])
    a.v("v_add_f32", acc[0], acc[0], acc[2]); a.v("v_add_f32", acc[4], acc[4], acc[6])
    a.v("v_mov_b32", acc[1], acc[0]); a.v("v_mov_b32", acc[5], acc[4])
    a.permswap(acc[0], acc[1]); a.permswap(acc[4], acc[5])
    a.v("v_add_f32", acc[0], acc[0], acc[1]); a.v("v_add_f32", acc[4], acc[4], acc[5])
    a.v("v_mul_f32", acc[0], f32(1 / 512), acc[0])
    a.v("v_mul_f32", acc[4], f32(1 / 512), acc[4])
    a.v("v_fma_f32", acc[4], Neg(acc[0]), acc[0], acc[4])
    a.v("v_max_f32", acc[4], 0, acc[4])
    a.v("v_cvt_pk_bf16_f32", acc[1], acc[0], acc[4])
    a.v("v_lshlrev_b32", vM, 16, acc[1])
    a.v("v_and_b32", acc[2], 0xffff0000, acc[1])
    a.v("v_add_f32", acc[2], f32(1e-5), acc[2])
    a.v("v_cvt_pk_bf16_f32", acc[2], acc[2], acc[2])
    a.v("v_and_b32", acc[2], 0xffff0000, acc[2])
    a.v("v_sqrt_f32", acc[2], acc[2])
    a.v("v_cvt_pk_bf16_f32", acc[2], acc[2], acc[2])
    a.v("v_and_b32", acc[2], 0xffff0000, acc[2])
    a.v("v_rcp_f32", vR, acc[2])
    a.v("v_mul_f32", vM, vM, vR)
    def norm_ops(t):
        chains = []
        for r in range(4):
            x = V(4 * t + r); ta = V(192 + 2 * r); tb = V(193 + 2 * r)
            chains.append([("v_lshlrev_b32", ta, 16, x), ("v_and_b32", tb, 0xffff0000, x),
                           ("v_fma_f32", ta, ta, vR, Neg(vM)), ("v_fma_f32", tb, tb, vR, Neg(vM)),
                           ("v_cvt_pk_bf16_f32", x, ta, tb)])
        return interleave(*chains)
    emit(norm_ops(0))
    emit(tr_base(B0, 8, 64, 32)); a.v("v_add_u32", B1, 0x10000, B0)
    emit(tr_base(B2, 8, 32, FMAT)); a.v("v_add_u32", B3, 0x10000, B2)
    stamp(a, 'stats', WS_)
    if "--prio" in sys.argv:
        a.s("s_cmp_ge_u32", sWave, 4)
        a.raw("s_cbranch_scc0 L_prio", "branch")
        a.raw("s_setprio 1")
        a.label("L_prio")

    items = []
    def item(chunk, reads, D, Bop, C, pre=None, fill=None):
        items.append(dict(chunk=chunk, reads=reads, D=D, B=Bop, C=C, pre=pre or [], fill=fill or []))
    def lohi(lo, hi, off): return (lo, off) if off < 65536 else (hi, off - 65536)
    QACC = [V(128 + 16 * d, 16) for d in range(4)]
    for t in range(32):
        c, s_ = t // 8, t % 8
        nxt = norm_ops(t + 1) if t + 1 < 32 else []
        for d in range(4):
            rds = [("ds_read_b64_tr_b16", (2 * sec, 2)) + lohi(B0, B1, c * SLOT + d * 8192 + (16 * s_ + 4 * sec) * 64) for sec in range(2)]
            item(c, rds, QACC[d], X(t), 0 if t == 0 else QACC[d], fill=nxt[5 * d:5 * d + 5])
    def side_job():
        vS = V(200)
        emit(tr_base(vS, 4, 1024, 32))
        a.s("s_lshl_b32", sT, sWave, 7)
        a.s("s_add_u32", sT, sT, SIDE)
        a.v("v_add_u32", vS, sT, vS)
    def side_part(m):
        def f():
            vS = V(200)
            for e in range(2):
                b = V(204, 4) if e else V(200, 4)
        return f
    qpack = [("v_mul_f32", V(128 + r), sL2E, V(128 + r)) for r in range(64)]
    for d in range(4):
        for i in range(8):
            qpack.append(("v_cvt_pk_bf16_f32", V(128 + 8 * d + i), V(128 + 16 * d + 2 * i), V(128 + 16 * d + 2 * i + 1)))
    for t in range(8):
        qpack.append(lambda t=t: a.permswap(V(128 + 4 * t), V(128 + 4 * t + 2)))
        qpack.append(lambda t=t: a.permswap(V(128 + 4 * t + 1), V(128 + 4 * t + 3)))
    qpack.append(lambda: stamp(a, 'qproj', WS_))
    Qf = lambda t: V(128 + 4 * t, 4)
    FACC = [V(160 + 16 * u, 16) for u in range(3)]
    KA0, KA1, KA0h, KA1h = B0, B1, V(242), V(245)
    kbase = [("v_and_b32", vTmp, 31, vLane), ("v_lshrrev_b32", vT2, 5, vLane), ("v_bfe_u32", vT3, vLane, 2, 2),
             ("v_xor_b32", vT2, vT2, vT3), ("v_lshlrev_b32", vT2, 4, vT2), ("v_lshl_add_u32", KA0, vTmp, 6, vT2),
             ("v_xor_b32", KA1, 32, KA0), ("v_add_u32", KA0h, 0x10000, KA0), ("v_add_u32", KA1h, 0x10000, KA1)]
    sC2, sFE, vC1 = S(92), S(93), V(20)
    C1 = -2 * (2 / 3.141592653589793) ** 0.5 * LOG2E
    C2 = C1 * 0.044715
    fepi = []
    def fe0():
        a.s("s_mov_b32", sC2, f32(C2))
        a.s("s_lshl_b32", sFE, sU0, 10)
        a.s("s_add_u32", sFE, sAct, sFE)
        a.s("s_add_u32", sFE, sFE, 256 * 1024)
        a.v("v_mov_b32", vC1, f32(C1))
    fepu = [[fe0], [], []]
    for u in range(3):
        A = FACC[u]
        chains = []
        for p in range(4):
            g0, g1, u0, u1 = A[2 * p], A[2 * p + 1], A[8 + 2 * p], A[9 + 2 * p]
            t0, t1 = V(2 * p), V(2 * p + 1)
            chains.append([("v_cvt_pk_bf16_f32", t0, g0, g1), ("v_cvt_pk_bf16_f32", t1, u0, u1),
                  ("v_lshlrev_b32", g0, 16, t0), ("v_and_b32", g1, 0xffff0000, t0),
                  ("v_lshlrev_b32", u0, 16, t1), ("v_and_b32", u1, 0xffff0000, t1),
                  ("v_mul_f32", t0, g0, g0), ("v_mul_f32", t1, g1, g1),
                  ("v_fma_f32", t0, t0, sC2, vC1), ("v_fma_f32", t1, t1, sC2, vC1),
                  ("v_mul_f32", t0, t0, g0), ("v_mul_f32", t1, t1, g1),
                  ("v_exp_f32", t0, t0), ("v_exp_f32", t1, t1),
                  ("v_add_f32", t0, 1.0, t0), ("v_add_f32", t1, 1.0, t1),
                  ("v_rcp_f32", t0, t0), ("v_rcp_f32", t1, t1),
                  ("v_mul_f32", g0, g0, t0), ("v_mul_f32", g1, g1, t1),
                  ("v_cvt_pk_bf16_f32", t0, g0, g1),
                  ("v_lshlrev_b32", g0, 16, t0), ("v_and_b32", g1, 0xffff0000, t0),
                  ("v_mul_f32", g0, g0, u0), ("v_mul_f32", g1, g1, u1),
                  ("v_cvt_pk_bf16_f32", V(8 + 4 * u + p), g0, g1)])
        fepu[u] += interleave(*chains)
        fepu[u].append(lambda u=u: a.bstore("buffer_store_dwordx4", V(8 + 4 * u, 4), vL16, WS_, sFE, u * 1024))
    def split8(ops, start=0):
        n = 8 - start
        out = [[] for _ in range(8)]
        for j in range(n):
            out[start + j] = ops[len(ops) * j // n: len(ops) * (j + 1) // n]
        return out
    def fitem(t, u, pre=None, fill=None):
        c, s_ = t // 8, t % 8
        rds = [("ds_read_b64_tr_b16", (2 * sec, 2)) + lohi(B2, B3, c * SLOT + u * 4096 + (16 * s_ + 4 * sec) * 32) for sec in range(2)]
        item(4 + c, rds, FACC[u], X(t), 0 if t == 0 else FACC[u], pre=pre, fill=fill)
    for t in range(24):
        for u in range(3):
            fitem(t, u, pre=qpack if (t == 0 and u == 0) else None, fill=kbase if (t == 4 and u == 0) else None)
    for u in range(3):
        fl = split8(fepu[u - 1], 1) if u else [None] * 8
        for k in range(8): fitem(24 + k, u, fill=fl[k])
    OACC = [V(16 * d, 16) for d in range(4)]
    SP = [V(64, 16), V(80, 16)]
    E = V(96, 16); NEG = V(112, 16)
    PP = [V(160, 8), V(168, 8)]
    LL = [V(176, 2), V(178, 2)]
    VA, VAh = V(180), V(181)
    tA, tB = V(182), V(183)
    rare = []
    def slot_off(n): return ((8 + n // 2) % 4) * SLOT
    def chk(n):
        def f():
            a.v("v_add_f32", tA, LL[n % 2][0], LL[n % 2][1])
            a.v("v_cmp_lt_f32", VCC, sThr, tA)
            a.s("s_cmp_lg_u64", VCC, 0)
            a.raw(f"s_cbranch_scc1 L_rare{n}", "branch")
            a.label(f"L_back{n}")
            rare.append(n)
        return f
    def b_ops(n):
        S_ = SP[n % 2]; Ln = LL[n % 2]; Lo = LL[(n + 1) % 2]
        ops = []
        for i in range(8):
            ops.append(("v_exp_f32", E[2 * i], S_[2 * i]))
            ops.append(("v_exp_f32", E[2 * i + 1], S_[2 * i + 1]))
            if i > 0:
                ops.append(("v_add_f32", Ln[0], (Lo if i == 1 else Ln)[0], E[2 * i - 2]))
                ops.append(("v_add_f32", Ln[1], (Lo if i == 1 else Ln)[1], E[2 * i - 1]))
        ops.append(("v_add_f32", Ln[0], Ln[0], E[14]))
        ops.append(("v_add_f32", Ln[1], Ln[1], E[15]))
        ops.append(chk(n))
        for i in range(8):
            ops.append(("v_cvt_pk_bf16_f32", PP[n % 2][i], E[2 * i], E[2 * i + 1]))
        return ops
    def itemsA(n, pre=None, fills=None):
        for t in range(8):
            off = slot_off(n) + (t >> 1) * 4096 + (n % 2) * 2048
            r = lohi(KA1, KA1h, off) if t & 1 else lohi(KA0, KA0h, off)
            item(8 + n // 2, [("ds_read_b128", (0, 4)) + r], SP[n % 2], Qf(t), (0 if n == 0 else NEG) if t == 0 else SP[n % 2],
                 pre=pre if t == 0 else None, fill=fills[t] if fills else None)
    def itemsC(n, fills=None):
        for i in range(8):
            half, dt = i // 4, i % 4
            rds = [("ds_read_b64_tr_b16", (2 * sec, 2)) + lohi(VA, VAh, slot_off(n) + 16384 + dt * 4096 + (32 * (n % 2) + 16 * half + 8 * sec) * 64) for sec in range(2)]
            item(8 + n // 2, rds, OACC[dt], PP[n % 2].sub(4 * half, 4), 0 if (n == 0 and half == 0) else OACC[dt],
                 fill=fills[i] if fills else None)
    def split(ops, k, start=0):
        n = 8 - start
        out = [[] for _ in range(8)]
        for j in range(n):
            out[start + j] = ops[len(ops) * j // n: len(ops) * (j + 1) // n]
        return out
    vbase = tr_base(VA, 4, 64, 32) + [("v_add_u32", VAh, 0x10000, VA), lambda: a.s("s_mov_b32", sThr, f32(2.0 ** 30)), lambda: stamp(a, 'ffn', WS_)]
    itemsA(0, pre=vbase, fills=split8(fepu[2], 1))
    S0 = SP[0]
    t0ops = [("v_max3_f32", tA, S0[0], S0[1], S0[2])]
    for i in range(3, 15, 2): t0ops.append(("v_max3_f32", tA, S0[i], S0[i + 1], tA))
    t0ops += [("v_max_f32", tA, tA, S0[15]), ("v_mov_b32", tB, tA), lambda: a.permswap(tA, tB), ("v_max_f32", tA, tA, tB)]
    t0ops += [("v_sub_f32", NEG[r], 0, tA) for r in range(16)]
    t0ops += [("v_sub_f32", S0[r], S0[r], tA) for r in range(16)]
    t0ops += [("v_mov_b32", LL[1][0], 0), ("v_mov_b32", LL[1][1], 0)]
    pend = b_ops(0)
    for n in range(16):
        if n + 1 < 16:
            itemsA(n + 1, pre=t0ops if n == 0 else None, fills=split(pend, 8))
            prec = None
        else:
            prec = pend
        nxt = b_ops(n + 1) if n + 1 < 16 else []
        first, pend = nxt[:20], nxt[20:]
        k0 = len(items)
        itemsC(n, fills=split(first, 8, 3))
        if prec: items[k0]["pre"] = prec

    last_of_chunk = {}
    for i, it in enumerate(items): last_of_chunk[it["chunk"]] = i
    synced = set()
    def sync(ci, i):
        if FINE: stamp(a, f'c{ci}pre', WS_)
        a.wait_vm(f"c{ci}")
        a.barrier()
        if FINE: stamp(a, f'c{ci}bar', WS_)
        synced.add(ci)
        done = -1
        while done + 1 < 16 and last_of_chunk[done + 1] <= i: done += 1
        while issued[0] <= min(done + 4, 15):
            dmaq.extend((issued[0], g) for g in chunk_groups(issued[0])); issued[0] += 1
            if issued[0] == 3: dmaq.extend((3, g) for g in side_groups())
    def reads(j, i):
        it = items[j]
        if it["chunk"] not in synced:
            while dmaq and dmaq[0][0] <= it["chunk"]: dmaq.pop(0)[1]()
            sync(it["chunk"], i)
        for op, (so, sn), r, off in it["reads"]:
            a.ds_read(op, pool[j % NB].sub(so, sn), r, off)
    def side_exec():
        vS = V(200)
        emit(tr_base(vS, 4, 1024, 32))
        a.s("s_lshl_b32", sT, sWave, 7)
        a.s("s_add_u32", sT, sT, SIDE)
        a.v("v_add_u32", vS, sT, vS)
        a.s("s_mul_i32", sT, sWave, 2 * KS_W * 1024)
        a.s("s_lshl_b32", sT2, S(2), 10)
        a.s("s_add_u32", sT, sT, sT2)
        a.s("s_add_u32", sT, sT, WFRAG_OFF)
        a.s("s_add_u32", sT2, sT, KS_W * 1024)
        b = V(204, 4)
        for m in range(2):
            for e in range(2):
                a.ds_read("ds_read_b64_tr_b16", b.sub(0, 2), vS, m * 16384 + e * 64)
                a.ds_read("ds_read_b64_tr_b16", b.sub(2, 2), vS, m * 16384 + e * 64 + 8 * 1024)
                a.bstore("buffer_store_dwordx4", b, vL16, WS_, sT2 if e else sT)
            if m == 0:
                a.s("s_add_u32", sT, sT, 256 * 1024)
                a.s("s_add_u32", sT2, sT2, 256 * 1024)
                a.s("s_cmp_ge_u32", S(2), 86)
                a.s("s_cselect_b32", sT, 0x40000000, sT)
                a.s("s_cselect_b32", sT2, 0x40000000, sT2)
    for j in range(NB): reads(j, -1)
    for i, it in enumerate(items):
        emit(it["pre"])
        if WB > 1 and i % WB == 0: a.touch([pool[(i + k) % NB] for k in range(WB)])
        a.mfma(it["D"], pool[i % NB], it["B"], it["C"])
        if i + NB < len(items): reads(i + NB, i)
        if dmaq and i % DMARATE == 0: dmaq.pop(0)[1]()
        emit(it["fill"])
        if i == SIDEAT: side_exec()
    stamp(a, 'vph', WS_)
    Lf = LL[15 % 2]
    a.v("v_add_f32", tA, Lf[0], Lf[1])
    a.v("v_mov_b32", tB, tA)
    a.permswap(tA, tB)
    a.v("v_add_f32", tA, tA, tB)
    a.v("v_rcp_f32", tA, tA)
    a.s("s_lshl_b32", sT, sHead, 13)
    a.s("s_add_u32", sT, sT, sAct)
    a.s("s_add_u32", sT2, sT, 4096)
    for d in range(4):
        for r in range(16):
            a.v("v_mul_f32", OACC[d][r], OACC[d][r], tA)
        for i in range(8):
            a.v("v_cvt_pk_bf16_f32", V(64 + 8 * d + i), OACC[d][2 * i], OACC[d][2 * i + 1])
        for hf in range(2):
            t = 2 * d + hf
            a.bstore("buffer_store_dwordx4", V(64 + 8 * d + 4 * hf, 4), vL16, WS_, sT if t < 4 else sT2, (t % 4) * 1024)
    if STAMP: a.raw("s_waitcnt vmcnt(0)")
    stamp(a, 'end', WS_); stamp(a, 'RTend', WS_, True)
    a.label("L_attn_end")
    a.raw("s_endpgm", "end")
    txt = a.text()
    for n in rare:
        S_ = SP[n % 2]; Sn = SP[(n + 1) % 2]; Ln = LL[n % 2]; Lo = LL[(n + 1) % 2]
        L = [f"L_rare{n}:", "s_nop 15", "s_nop 15"]
        L.append(f"v_max3_f32 {tA}, {S_[0]}, {S_[1]}, {S_[2]}")
        for i in range(3, 15, 2): L.append(f"v_max3_f32 {tA}, {S_[i]}, {S_[i+1]}, {tA}")
        L.append(f"v_max_f32 {tA}, {tA}, {S_[15]}")
        L.append(f"v_mov_b32 {tB}, {tA}")
        L.append("s_nop 3")
        L.append(f"v_permlane32_swap_b32 {tA}, {tB}")
        L.append("s_nop 3")
        L.append(f"v_max3_f32 {tA}, {tA}, {tB}, 0")
        L.append(f"v_sub_f32 {tB}, 0, {tA}")
        L.append(f"v_exp_f32 {tB}, {tB}")
        L.append("s_nop 3")
        for r in range(64): L.append(f"v_mul_f32 v{r}, v{r}, {tB}")
        L.append(f"v_mul_f32 {Lo[0]}, {Lo[0]}, {tB}")
        L.append(f"v_mul_f32 {Lo[1]}, {Lo[1]}, {tB}")
        for r in range(16):
            L.append(f"v_sub_f32 {S_[r]}, {S_[r]}, {tA}")
            L.append(f"v_sub_f32 {NEG[r]}, {NEG[r]}, {tA}")
            if n + 1 < 16: L.append(f"v_sub_f32 {Sn[r]}, {Sn[r]}, {tA}")
        for r in range(16): L.append(f"v_exp_f32 {E[r]}, {S_[r]}")
        L.append("s_nop 3")
        L.append(f"v_add_f32 {Ln[0]}, {Lo[0]}, {E[0]}")
        L.append(f"v_add_f32 {Ln[1]}, {Lo[1]}, {E[1]}")
        for i in range(1, 8):
            L.append(f"v_add_f32 {Ln[0]}, {Ln[0]}, {E[2*i]}")
            L.append(f"v_add_f32 {Ln[1]}, {Ln[1]}, {E[2*i+1]}")
        L.append("s_nop 7")
        L.append(f"s_branch L_back{n}")
        txt += "\n".join(("" if l.endswith(":") else "    ") + l for l in L) + "\n"
    return txt
```

```python
import sys
from asmlib import *
from common import *
from gen3_ln import XN_OFF

def argval(n, d):
    for x in sys.argv:
        if x.startswith(f'--{n}='): return int(x.split('=')[1])
    return d
DMARATE = argval('dmarate', 2)
SIDEAT = argval('sideat', 110)
WB = argval('wb', 4)
def gen_attn():
    a = Asm()
    sWave, sHead, sQblk, sU0, sT, sT2, sM0b, sFb, sOnes, sL2E = [S(i) for i in range(4, 14)]
    sT3 = S(15); sKVb = S(89); sThr = S(90); sD = S(91); sAct = S(84)
    X_, K_, WQ_, WO_, WD_, WS_, WG_, V_, WU_ = [S(40 + 4 * i, 4) for i in range(9)]
    vDV = V(251)
    vLane, vL16, vDW, vDF, vDK = V(240), V(241), V(242), V(243), V(244)
    vM, vR = V(245), V(246)
    B0, B1, B2, B3 = V(247), V(248), V(249), V(250)
    vTmp, vT2, vT3 = V(252), V(253), V(254)
    X = lambda t: V(4 * t, 4)
    NB = argval('nb', 8)
    pool = [V(208 + 4 * i, 4) for i in range(NB)]

    a.s("s_cmp_ge_u32", S(2), 256)
    a.raw("s_cbranch_scc1 L_attn_end", "branch")
    a.smem("s_load_dwordx16", S(16, 16), S(0, 2), 0)
    a.smem("s_load_dwordx8", S(32, 8), S(0, 2), 64)
    a.v("v_and_b32", vLane, 63, V(0))
    a.v("v_lshrrev_b32", vTmp, 6, V(0))
    a.v("v_readfirstlane_b32", sWave, vTmp)
    a.s("s_and_b32", sT, S(2), 7)
    a.s("s_lshr_b32", sT2, S(2), 3)
    a.s("s_lshl_b32", sHead, sT, 2)
    a.s("s_and_b32", sT, sT2, 3)
    a.s("s_add_u32", sHead, sHead, sT)
    a.s("s_lshr_b32", sQblk, sT2, 2)
    a.s("s_mul_i32", sT, sHead, 3)
    a.s("s_lshl_b32", sT2, sHead, 1)
    a.s("s_add_u32", sT2, sT2, 22)
    a.s("s_min_u32", sU0, sT, sT2)
    a.s("s_mov_b32", sOnes, 0x3f803f80)
    a.s("s_mov_b32", sL2E, f32(LOG2E * SCALE))
    a.s("s_lshl_b32", sM0b, sWave, 10)
    a.v("v_lshlrev_b32", vL16, 4, vLane)
    a.v("v_lshrrev_b32", vTmp, 5, vLane)
    a.v("v_and_b32", vT2, 31, vLane)
    a.v("v_xor_b32", vT2, vT2, vTmp)
    a.v("v_lshlrev_b32", vT2, 4, vT2)
    a.v("v_lshl_add_u32", V(224), vTmp, 10, vT2)
    for i in range(1, 8): a.v("v_xor_b32", V(224 + i), 32 * i, V(224))
    a.s("s_lshl_b32", sT, sQblk, 8)
    a.s("s_lshl_b32", sT2, sWave, 5)
    a.s("s_add_u32", sT, sT, sT2)
    a.s("s_lshl_b32", S(85), sT, 10)
    a.s("s_lshl_b32", S(83), sWave, 14)
    a.s("s_add_u32", S(83), S(83), 32768)
    a.raw("s_waitcnt lgkmcnt(0)")
    srd(a, X_, S(16), S(17), 2097152)
    def x_round(rd):
        for n in range(16):
            a.s("s_add_u32", sT, S(85), n * 2048)
            a.s("s_add_u32", M0, S(83), n * 1024 - rd * 512)
            a.dma(V(224 + (n & 7)), X_, sT, rd * 512, tag=f"x{rd}")
    x_round(0)
    a.s("s_and_b32", sT3, sWave, 3)
    a.s("s_lshl_b32", sT, sT3, 5)
    a.v("v_lshrrev_b32", vTmp, 2, vLane)
    a.v("v_add_u32", vTmp, sT, vTmp)
    a.v("v_and_b32", vT2, 3, vLane)
    a.v("v_lshlrev_b32", vT3, 4, vT2)
    a.v("v_lshl_add_u32", vDW, vTmp, 13, vT3)
    a.s("s_lshl_b32", sT, sT3, 4)
    a.v("v_lshrrev_b32", vTmp, 2, vLane)
    a.v("v_add_u32", vTmp, sT, vTmp)
    a.v("v_lshl_add_u32", vDV, vTmp, 8, vT3)
    a.v("v_bfe_u32", vT3, vLane, 4, 2)
    a.v("v_xor_b32", vT3, vT3, vT2)
    a.v("v_lshlrev_b32", vT3, 4, vT3)
    a.v("v_lshl_add_u32", vDK, vTmp, 8, vT3)
    a.s("s_lshl_b32", sT2, sT3, 5)
    a.v("v_lshrrev_b32", vTmp, 1, vLane)
    a.v("v_add_u32", vTmp, sT2, vTmp)
    a.s("s_mov_b32", sT, 2752)
    a.v("v_mul_lo_u32", vTmp, vTmp, sT)
    a.v("v_and_b32", vT2, 1, vLane)
    a.v("v_lshl_add_u32", vDF, vT2, 4, vTmp)
    a.s("s_lshl_b32", sFb, sT3, 10)
    a.s("s_lshl_b32", sM0b, sT3, 11)
    a.s("s_mul_i32", sT, sHead, 524288)
    a.s("s_add_u32", sT, sT, 393216)
    a.s("s_add_u32", S(80), S(18), sT); a.s("s_addc_u32", S(81), S(19), 0)
    srd(a, K_, S(80), S(81), 131072)
    a.s("s_add_u32", S(80), S(20), sT); a.s("s_addc_u32", S(81), S(21), 0)
    srd(a, V_, S(80), S(81), 131072)
    a.s("s_lshl_b32", sT, sHead, 8)
    a.s("s_add_u32", S(80), S(22), sT); a.s("s_addc_u32", S(81), S(23), 0)
    a.s("s_sub_u32", S(82), 4194304, sT)
    srd(a, WQ_, S(80), S(81), S(82))
    srd(a, WO_, S(24), S(25), 4194304)
    srd(a, WD_, S(32), S(33), 1409024)
    srd(a, WS_, S(38), S(39), 268435456)
    srd(a, WG_, S(28), S(29), 1409024)
    srd(a, WU_, S(30), S(31), 1409024)
    a.s("s_mul_i32", sT, sQblk, 8 * KS_ACT * 1024)
    a.s("s_mul_i32", sT2, sWave, KS_ACT * 1024)
    a.s("s_add_u32", sAct, sT, sT2)
    stamp_init(a, sWave)
    stamp(a, 'start', WS_); stamp(a, 'RTstart', WS_, True)

    lab = [0]
    def condgroup(fs):
        def g():
            lab[0] += 1
            a.s("s_cmp_ge_u32", sWave, 4)
            a.raw(f"s_cbranch_scc1 L_nd{lab[0]}", "branch")
            a.cond_begin()
            for f in fs: f()
            a.cond_end()
            a.label(f"L_nd{lab[0]}")
        return g
    def chunk_groups(ci):
        ty, c = ci // 4, ci % 4
        slot = (ci % 4) * SLOT
        tag = f"c{ci}"
        G = []
        if ty == 1:
            for m, rs in ((0, WG_), (1, WU_)):
                for j in range(3):
                    def g(j=j, m=m, rs=rs):
                        a.s("s_lshl_b32", sD, sU0, 5)
                        a.s("s_add_u32", sD, sD, c * 128 * 2752)
                        a.s("s_add_u32", M0, sFb, slot + m * FMAT + j * 4096 - j * 32)
                        a.dma(vDF, rs, sD, j * 32, tag=tag, cond=True)
                    G.append(g)
        elif ty == 0:
            for rg in range(2):
                for j in range(4):
                    def g(j=j, rg=rg):
                        a.s("s_mov_b32", sD, c * 128 * 8192 + rg * 16 * 8192)
                        a.s("s_add_u32", M0, sM0b, slot + rg * 1024 + j * 8192 - j * 64)
                        a.dma(vDW, WQ_, sD, j * 64, tag=tag, cond=True)
                    G.append(g)
        else:
            for m, (vo, rs) in enumerate(((vDK, K_), (vDV, V_))):
                for j in range(4):
                    def g(j=j, m=m, vo=vo, rs=rs):
                        a.s("s_mov_b32", sD, (ci - 8) * 16384)
                        a.s("s_add_u32", M0, sFb, slot + m * 16384 + j * 4096 - j * 64)
                        a.dma(vo, rs, sD, j * 64, tag=tag, cond=True)
                    G.append(g)
        return [condgroup(G[i:i + 2]) for i in range(0, len(G), 2)]
    def side_groups():
        G = []
        for m, rs in ((0, WO_), (1, WD_)):
            for e in range(4):
                def g(m=m, rs=rs, e=e):
                    a.s("s_lshl_b32", sD, sWave, 12)
                    a.s("s_add_u32", M0, sD, SIDE + m * 16384)
                    a.s("s_lshl_b32", sT3, S(2), 14)
                    a.s("s_add_u32", sD, sD, sT3)
                    a.dma(vL16, rs, sD, e * 1024, tag="side", cond=True)
                G.append(g)
        return [condgroup(G[i:i + 2]) for i in range(0, len(G), 2)]
    for g in chunk_groups(0): g()
    issued = [1]
    dmaq = []

    def tr_base(dst, rowmul_hh, rowbytes, dhbytes):
        return [("v_lshrrev_b32", vTmp, 5, vLane), ("v_mul_u32_u24", vTmp, rowmul_hh, vTmp),
                ("v_bfe_u32", vT2, vLane, 2, 2), ("v_add_u32", vTmp, vTmp, vT2),
                ("v_mul_u32_u24", vTmp, rowbytes, vTmp), ("v_bfe_u32", vT2, vLane, 4, 1),
                ("v_mul_u32_u24", vT2, dhbytes, vT2), ("v_add_u32", vTmp, vTmp, vT2),
                ("v_and_b32", vT2, 3, vLane), ("v_lshl_add_u32", dst, vT2, 3, vTmp)]
    def emit(ops):
        for o in ops:
            if callable(o): o()
            else: a.v(*o)

    a.v("v_and_b32", vTmp, 31, vLane)
    a.v("v_lshrrev_b32", vT2, 5, vLane)
    a.v("v_and_b32", vT3, 15, vLane)
    a.v("v_xor_b32", vT2, vT2, vT3)
    a.v("v_lshlrev_b32", vT2, 4, vT2)
    a.v("v_lshl_add_u32", B0, vTmp, 9, vT2)
    a.v("v_add_u32", B0, S(83), B0)
    def x_read(rd):
        a.wait_vm(f"x{rd}")
        for t in range(16):
            if t: a.v("v_xor_b32", V(232 + (t & 3)), 32 * t, B0)
            a.ds_read("ds_read_b128", X(16 * rd + t), V(232 + (t & 3)) if t else B0, 0)
    x_read(0)
    a.wait_lgkm0()
    x_round(1)
    stamp(a, 'xA', WS_)
    acc = [V(192 + i) for i in range(8)]
    for r in acc: a.v("v_mov_b32", r, 0)
    for t in range(32):
        if t == 16: x_read(1)
        for r in range(4):
            x = V(4 * t + r)
            a.v("v_dot2_f32_bf16", acc[r], x, sOnes, acc[r])
            a.v("v_dot2_f32_bf16", acc[4 + r], x, x, acc[4 + r])
    a.v("v_add_f32", acc[0], acc[0], acc[1]); a.v("v_add_f32", acc[2], acc[2], acc[3])
    a.v("v_add_f32", acc[4], acc[4], acc[5]); a.v("v_add_f32", acc[6], acc[6], acc[7])
    a.v("v_add_f32", acc[0], acc[0], acc[2]); a.v("v_add_f32", acc[4], acc[4], acc[6])
    a.v("v_mov_b32", acc[1], acc[0]); a.v("v_mov_b32", acc[5], acc[4])
    a.permswap(acc[0], acc[1]); a.permswap(acc[4], acc[5])
    a.v("v_add_f32", acc[0], acc[0], acc[1]); a.v("v_add_f32", acc[4], acc[4], acc[5])
    a.v("v_mul_f32", acc[0], f32(1 / 512), acc[0])
    a.v("v_mul_f32", acc[4], f32(1 / 512), acc[4])
    a.v("v_fma_f32", acc[4], Neg(acc[0]), acc[0], acc[4])
    a.v("v_max_f32", acc[4], 0, acc[4])
    a.v("v_cvt_pk_bf16_f32", acc[1], acc[0], acc[4])
    a.v("v_lshlrev_b32", vM, 16, acc[1])
    a.v("v_and_b32", acc[2], 0xffff0000, acc[1])
    a.v("v_add_f32", acc[2], f32(1e-5), acc[2])
    a.v("v_cvt_pk_bf16_f32", acc[2], acc[2], acc[2])
    a.v("v_and_b32", acc[2], 0xffff0000, acc[2])
    a.v("v_sqrt_f32", acc[2], acc[2])
    a.v("v_cvt_pk_bf16_f32", acc[2], acc[2], acc[2])
    a.v("v_and_b32", acc[2], 0xffff0000, acc[2])
    a.v("v_rcp_f32", vR, acc[2])
    a.v("v_mul_f32", vM, vM, vR)
    def norm_ops(t):
        chains = []
        for r in range(4):
            x = V(4 * t + r); ta = V(192 + 2 * r); tb = V(193 + 2 * r)
            chains.append([("v_lshlrev_b32", ta, 16, x), ("v_and_b32", tb, 0xffff0000, x),
                           ("v_fma_f32", ta, ta, vR, Neg(vM)), ("v_fma_f32", tb, tb, vR, Neg(vM)),
                           ("v_cvt_pk_bf16_f32", x, ta, tb)])
        return interleave(*chains)
    emit(norm_ops(0))
    emit(tr_base(B0, 8, 64, 32)); a.v("v_add_u32", B1, 0x10000, B0)
    emit(tr_base(B2, 8, 32, FMAT)); a.v("v_add_u32", B3, 0x10000, B2)
    stamp(a, 'stats', WS_)
    if "--prio" in sys.argv:
        a.s("s_cmp_ge_u32", sWave, 4)
        a.raw("s_cbranch_scc0 L_prio", "branch")
        a.raw("s_setprio 1")
        a.label("L_prio")

    items = []
    def item(chunk, reads, D, Bop, C, pre=None, fill=None):
        items.append(dict(chunk=chunk, reads=reads, D=D, B=Bop, C=C, pre=pre or [], fill=fill or []))
    def lohi(lo, hi, off): return (lo, off) if off < 65536 else (hi, off - 65536)
    QACC = [V(128 + 16 * d, 16) for d in range(4)]
    for t in range(32):
        c, s_ = t // 8, t % 8
        nxt = norm_ops(t + 1) if t + 1 < 32 else []
        for d in range(4):
            rds = [("ds_read_b64_tr_b16", (2 * sec, 2)) + lohi(B0, B1, c * SLOT + d * 8192 + (16 * s_ + 4 * sec) * 64) for sec in range(2)]
            item(c, rds, QACC[d], X(t), 0 if t == 0 else QACC[d], fill=nxt[5 * d:5 * d + 5])
    def side_job():
        vS = V(200)
        emit(tr_base(vS, 4, 1024, 32))
        a.s("s_lshl_b32", sT, sWave, 7)
        a.s("s_add_u32", sT, sT, SIDE)
        a.v("v_add_u32", vS, sT, vS)
    def side_part(m):
        def f():
            vS = V(200)
            for e in range(2):
                b = V(204, 4) if e else V(200, 4)
        return f
    qpack = [("v_mul_f32", V(128 + r), sL2E, V(128 + r)) for r in range(64)]
    for d in range(4):
        for i in range(8):
            qpack.append(("v_cvt_pk_bf16_f32", V(128 + 8 * d + i), V(128 + 16 * d + 2 * i), V(128 + 16 * d + 2 * i + 1)))
    for t in range(8):
        qpack.append(lambda t=t: a.permswap(V(128 + 4 * t), V(128 + 4 * t + 2)))
        qpack.append(lambda t=t: a.permswap(V(128 + 4 * t + 1), V(128 + 4 * t + 3)))
    qpack.append(lambda: stamp(a, 'qproj', WS_))
    Qf = lambda t: V(128 + 4 * t, 4)
    FACC = [V(160 + 16 * u, 16) for u in range(3)]
    KA0, KA1, KA0h, KA1h = B0, B1, V(242), V(245)
    kbase = [("v_and_b32", vTmp, 31, vLane), ("v_lshrrev_b32", vT2, 5, vLane), ("v_bfe_u32", vT3, vLane, 2, 2),
             ("v_xor_b32", vT2, vT2, vT3), ("v_lshlrev_b32", vT2, 4, vT2), ("v_lshl_add_u32", KA0, vTmp, 6, vT2),
             ("v_xor_b32", KA1, 32, KA0), ("v_add_u32", KA0h, 0x10000, KA0), ("v_add_u32", KA1h, 0x10000, KA1)]
    sC2, sFE, vC1 = S(92), S(93), V(20)
    C1 = -2 * (2 / 3.141592653589793) ** 0.5 * LOG2E
    C2 = C1 * 0.044715
    fepi = []
    def fe0():
        a.s("s_mov_b32", sC2, f32(C2))
        a.s("s_lshl_b32", sFE, sU0, 10)
        a.s("s_add_u32", sFE, sAct, sFE)
        a.s("s_add_u32", sFE, sFE, 256 * 1024)
        a.v("v_mov_b32", vC1, f32(C1))
    fepu = [[fe0], [], []]
    for u in range(3):
        A = FACC[u]
        chains = []
        for p in range(4):
            g0, g1, u0, u1 = A[2 * p], A[2 * p + 1], A[8 + 2 * p], A[9 + 2 * p]
            t0, t1 = V(2 * p), V(2 * p + 1)
            chains.append([("v_cvt_pk_bf16_f32", t0, g0, g1), ("v_cvt_pk_bf16_f32", t1, u0, u1),
                  ("v_lshlrev_b32", g0, 16, t0), ("v_and_b32", g1, 0xffff0000, t0),
                  ("v_lshlrev_b32", u0, 16, t1), ("v_and_b32", u1, 0xffff0000, t1),
                  ("v_mul_f32", t0, g0, g0), ("v_mul_f32", t1, g1, g1),
                  ("v_fma_f32", t0, t0, sC2, vC1), ("v_fma_f32", t1, t1, sC2, vC1),
                  ("v_mul_f32", t0, t0, g0), ("v_mul_f32", t1, t1, g1),
                  ("v_exp_f32", t0, t0), ("v_exp_f32", t1, t1),
                  ("v_add_f32", t0, 1.0, t0), ("v_add_f32", t1, 1.0, t1),
                  ("v_rcp_f32", t0, t0), ("v_rcp_f32", t1, t1),
                  ("v_mul_f32", g0, g0, t0), ("v_mul_f32", g1, g1, t1),
                  ("v_cvt_pk_bf16_f32", t0, g0, g1),
                  ("v_lshlrev_b32", g0, 16, t0), ("v_and_b32", g1, 0xffff0000, t0),
                  ("v_mul_f32", g0, g0, u0), ("v_mul_f32", g1, g1, u1),
                  ("v_cvt_pk_bf16_f32", V(8 + 4 * u + p), g0, g1)])
        fepu[u] += interleave(*chains)
        fepu[u].append(lambda u=u: a.bstore("buffer_store_dwordx4", V(8 + 4 * u, 4), vL16, WS_, sFE, u * 1024))
    def split8(ops, start=0):
        n = 8 - start
        out = [[] for _ in range(8)]
        for j in range(n):
            out[start + j] = ops[len(ops) * j // n: len(ops) * (j + 1) // n]
        return out
    def fitem(t, u, pre=None, fill=None):
        c, s_ = t // 8, t % 8
        rds = [("ds_read_b64_tr_b16", (2 * sec, 2)) + lohi(B2, B3, c * SLOT + u * 4096 + (16 * s_ + 4 * sec) * 32) for sec in range(2)]
        item(4 + c, rds, FACC[u], X(t), 0 if t == 0 else FACC[u], pre=pre, fill=fill)
    for t in range(24):
        for u in range(3):
            fitem(t, u, pre=qpack if (t == 0 and u == 0) else None, fill=kbase if (t == 4 and u == 0) else None)
    for u in range(3):
        fl = split8(fepu[u - 1], 1) if u else [None] * 8
        for k in range(8): fitem(24 + k, u, fill=fl[k])
    OACC = [V(16 * d, 16) for d in range(4)]
    SP = [V(64, 16), V(80, 16)]
    E = V(96, 16); NEG = V(112, 16)
    PP = [V(160, 8), V(168, 8)]
    LL = [V(176, 2), V(178, 2)]
    VA, VAh = V(180), V(181)
    tA, tB = V(182), V(183)
    rare = []
    def slot_off(n): return ((8 + n // 2) % 4) * SLOT
    def chk(n):
        def f():
            a.v("v_add_f32", tA, LL[n % 2][0], LL[n % 2][1])
            a.v("v_cmp_lt_f32", VCC, sThr, tA)
            a.s("s_cmp_lg_u64", VCC, 0)
            a.raw(f"s_cbranch_scc1 L_rare{n}", "branch")
            a.label(f"L_back{n}")
            rare.append(n)
        return f
    def b_ops(n):
        S_ = SP[n % 2]; Ln = LL[n % 2]; Lo = LL[(n + 1) % 2]
        ops = []
        for i in range(8):
            ops.append(("v_exp_f32", E[2 * i], S_[2 * i]))
            ops.append(("v_exp_f32", E[2 * i + 1], S_[2 * i + 1]))
            if i > 0:
                ops.append(("v_add_f32", Ln[0], (Lo if i == 1 else Ln)[0], E[2 * i - 2]))
                ops.append(("v_add_f32", Ln[1], (Lo if i == 1 else Ln)[1], E[2 * i - 1]))
        ops.append(("v_add_f32", Ln[0], Ln[0], E[14]))
        ops.append(("v_add_f32", Ln[1], Ln[1], E[15]))
        ops.append(chk(n))
        for i in range(8):
            ops.append(("v_cvt_pk_bf16_f32", PP[n % 2][i], E[2 * i], E[2 * i + 1]))
        return ops
    def itemsA(n, pre=None, fills=None):
        for t in range(8):
            off = slot_off(n) + (t >> 1) * 4096 + (n % 2) * 2048
            r = lohi(KA1, KA1h, off) if t & 1 else lohi(KA0, KA0h, off)
            item(8 + n // 2, [("ds_read_b128", (0, 4)) + r], SP[n % 2], Qf(t), (0 if n == 0 else NEG) if t == 0 else SP[n % 2],
                 pre=pre if t == 0 else None, fill=fills[t] if fills else None)
    def itemsC(n, fills=None):
        for i in range(8):
            half, dt = i // 4, i % 4
            rds = [("ds_read_b64_tr_b16", (2 * sec, 2)) + lohi(VA, VAh, slot_off(n) + 16384 + dt * 4096 + (32 * (n % 2) + 16 * half + 8 * sec) * 64) for sec in range(2)]
            item(8 + n // 2, rds, OACC[dt], PP[n % 2].sub(4 * half, 4), 0 if (n == 0 and half == 0) else OACC[dt],
                 fill=fills[i] if fills else None)
    def split(ops, k, start=0):
        n = 8 - start
        out = [[] for _ in range(8)]
        for j in range(n):
            out[start + j] = ops[len(ops) * j // n: len(ops) * (j + 1) // n]
        return out
    vbase = tr_base(VA, 4, 64, 32) + [("v_add_u32", VAh, 0x10000, VA), lambda: a.s("s_mov_b32", sThr, f32(2.0 ** 30)), lambda: stamp(a, 'ffn', WS_)]
    itemsA(0, pre=vbase, fills=split8(fepu[2], 1))
    S0 = SP[0]
    t0ops = [("v_max3_f32", tA, S0[0], S0[1], S0[2])]
    for i in range(3, 15, 2): t0ops.append(("v_max3_f32", tA, S0[i], S0[i + 1], tA))
    t0ops += [("v_max_f32", tA, tA, S0[15]), ("v_mov_b32", tB, tA), lambda: a.permswap(tA, tB), ("v_max_f32", tA, tA, tB)]
    t0ops += [("v_sub_f32", NEG[r], 0, tA) for r in range(16)]
    t0ops += [("v_sub_f32", S0[r], S0[r], tA) for r in range(16)]
    t0ops += [("v_mov_b32", LL[1][0], 0), ("v_mov_b32", LL[1][1], 0)]
    pend = b_ops(0)
    for n in range(16):
        if n + 1 < 16:
            itemsA(n + 1, pre=t0ops if n == 0 else None, fills=split(pend, 8))
            prec = None
        else:
            prec = pend
        nxt = b_ops(n + 1) if n + 1 < 16 else []
        first, pend = nxt[:20], nxt[20:]
        k0 = len(items)
        itemsC(n, fills=split(first, 8, 3))
        if prec: items[k0]["pre"] = prec

    last_of_chunk = {}
    for i, it in enumerate(items): last_of_chunk[it["chunk"]] = i
    synced = set()
    def sync(ci, i):
        if FINE: stamp(a, f'c{ci}pre', WS_)
        a.wait_vm(f"c{ci}")
        a.barrier()
        if FINE: stamp(a, f'c{ci}bar', WS_)
        synced.add(ci)
        done = -1
        while done + 1 < 16 and last_of_chunk[done + 1] <= i: done += 1
        while issued[0] <= min(done + 4, 15):
            dmaq.extend((issued[0], g) for g in chunk_groups(issued[0])); issued[0] += 1
            if issued[0] == 3: dmaq.extend((3, g) for g in side_groups())
    def reads(j, i):
        it = items[j]
        if it["chunk"] not in synced:
            while dmaq and dmaq[0][0] <= it["chunk"]: dmaq.pop(0)[1]()
            sync(it["chunk"], i)
        for op, (so, sn), r, off in it["reads"]:
            a.ds_read(op, pool[j % NB].sub(so, sn), r, off)
    def side_exec():
        vS = V(200)
        emit(tr_base(vS, 4, 1024, 32))
        a.s("s_lshl_b32", sT, sWave, 7)
        a.s("s_add_u32", sT, sT, SIDE)
        a.v("v_add_u32", vS, sT, vS)
        a.s("s_mul_i32", sT, sWave, 2 * KS_W * 1024)
        a.s("s_lshl_b32", sT2, S(2), 10)
        a.s("s_add_u32", sT, sT, sT2)
        a.s("s_add_u32", sT, sT, WFRAG_OFF)
        a.s("s_add_u32", sT2, sT, KS_W * 1024)
        b = V(204, 4)
        for m in range(2):
            for e in range(2):
                a.ds_read("ds_read_b64_tr_b16", b.sub(0, 2), vS, m * 16384 + e * 64)
                a.ds_read("ds_read_b64_tr_b16", b.sub(2, 2), vS, m * 16384 + e * 64 + 8 * 1024)
                a.bstore("buffer_store_dwordx4", b, vL16, WS_, sT2 if e else sT)
            if m == 0:
                a.s("s_add_u32", sT, sT, 256 * 1024)
                a.s("s_add_u32", sT2, sT2, 256 * 1024)
                a.s("s_cmp_ge_u32", S(2), 86)
                a.s("s_cselect_b32", sT, 0x40000000, sT)
                a.s("s_cselect_b32", sT2, 0x40000000, sT2)
    for j in range(NB): reads(j, -1)
    for i, it in enumerate(items):
        emit(it["pre"])
        if WB > 1 and i % WB == 0: a.touch([pool[(i + k) % NB] for k in range(WB)])
        a.mfma(it["D"], pool[i % NB], it["B"], it["C"])
        if i + NB < len(items): reads(i + NB, i)
        if dmaq and i % DMARATE == 0: dmaq.pop(0)[1]()
        emit(it["fill"])
        if i == SIDEAT: side_exec()
    stamp(a, 'vph', WS_)
    Lf = LL[15 % 2]
    a.v("v_add_f32", tA, Lf[0], Lf[1])
    a.v("v_mov_b32", tB, tA)
    a.permswap(tA, tB)
    a.v("v_add_f32", tA, tA, tB)
    a.v("v_rcp_f32", tA, tA)
    a.s("s_lshl_b32", sT, sHead, 13)
    a.s("s_add_u32", sT, sT, sAct)
    a.s("s_add_u32", sT2, sT, 4096)
    for d in range(4):
        for r in range(16):
            a.v("v_mul_f32", OACC[d][r], OACC[d][r], tA)
        for i in range(8):
            a.v("v_cvt_pk_bf16_f32", V(64 + 8 * d + i), OACC[d][2 * i], OACC[d][2 * i + 1])
        for hf in range(2):
            t = 2 * d + hf
            a.bstore("buffer_store_dwordx4", V(64 + 8 * d + 4 * hf, 4), vL16, WS_, sT if t < 4 else sT2, (t % 4) * 1024)
    if STAMP: a.raw("s_waitcnt vmcnt(0)")
    stamp(a, 'end', WS_); stamp(a, 'RTend', WS_, True)
    a.label("L_attn_end")
    a.raw("s_endpgm", "end")
    txt = a.text()
    for n in rare:
        S_ = SP[n % 2]; Sn = SP[(n + 1) % 2]; Ln = LL[n % 2]; Lo = LL[(n + 1) % 2]
        L = [f"L_rare{n}:", "s_nop 15", "s_nop 15"]
        L.append(f"v_max3_f32 {tA}, {S_[0]}, {S_[1]}, {S_[2]}")
        for i in range(3, 15, 2): L.append(f"v_max3_f32 {tA}, {S_[i]}, {S_[i+1]}, {tA}")
        L.append(f"v_max_f32 {tA}, {tA}, {S_[15]}")
        L.append(f"v_mov_b32 {tB}, {tA}")
        L.append("s_nop 3")
        L.append(f"v_permlane32_swap_b32 {tA}, {tB}")
        L.append("s_nop 3")
        L.append(f"v_max3_f32 {tA}, {tA}, {tB}, 0")
        L.append(f"v_sub_f32 {tB}, 0, {tA}")
        L.append(f"v_exp_f32 {tB}, {tB}")
        L.append("s_nop 3")
        for r in range(64): L.append(f"v_mul_f32 v{r}, v{r}, {tB}")
        L.append(f"v_mul_f32 {Lo[0]}, {Lo[0]}, {tB}")
        L.append(f"v_mul_f32 {Lo[1]}, {Lo[1]}, {tB}")
        for r in range(16):
            L.append(f"v_sub_f32 {S_[r]}, {S_[r]}, {tA}")
            L.append(f"v_sub_f32 {NEG[r]}, {NEG[r]}, {tA}")
            if n + 1 < 16: L.append(f"v_sub_f32 {Sn[r]}, {Sn[r]}, {tA}")
        for r in range(16): L.append(f"v_exp_f32 {E[r]}, {S_[r]}")
        L.append("s_nop 3")
        L.append(f"v_add_f32 {Ln[0]}, {Lo[0]}, {E[0]}")
        L.append(f"v_add_f32 {Ln[1]}, {Lo[1]}, {E[1]}")
        for i in range(1, 8):
            L.append(f"v_add_f32 {Ln[0]}, {Ln[0]}, {E[2*i]}")
            L.append(f"v_add_f32 {Ln[1]}, {Ln[1]}, {E[2*i+1]}")
        L.append("s_nop 7")
        L.append(f"s_branch L_back{n}")
        txt += "\n".join(("" if l.endswith(":") else "    ") + l for l in L) + "\n"
    return txt
```
